```python
import torch

def _softmax(x, axis=-1):
    return torch.softmax(x, dim=axis)
def _gelu(x):
    return torch.nn.functional.gelu(x, approximate="tanh")
def _silu(x):
    return torch.nn.functional.silu(x)
def _sigmoid(x):
    return torch.sigmoid(x)
def _layernorm(x, axis=-1, eps=1e-5):
    m = x.mean(dim=axis, keepdim=True)
    v = x.var(dim=axis, keepdim=True, unbiased=False)
    return (x - m) / torch.sqrt(v + eps)
def _scatter_add(tgt, idx, src, axis=0):
    return tgt.clone().index_add_(axis, idx, src)
def _segment_sum(src, seg, n):
    out = torch.zeros((n,) + src.shape[1:], dtype=src.dtype)
    return out.index_add_(0, seg, src)
def _pad(x, pw):
    flat = tuple(v for pair in reversed(pw) for v in pair)
    return torch.nn.functional.pad(x, flat)

kernel_name = 'standalone__gqa_block_cached__near_ridge'

def setup_inputs():

    _w = (lambda a: (lambda t: t.to(torch.bfloat16) if t.is_floating_point() else t)(torch.as_tensor(a)))
    B, Sq, D = 16, 80, 576
    Hq, Hkv, Sk, Dh = 32, 16, 512, 128
    assert Hq % Hkv == 0, (Hq, Hkv)
    return {
        "x": _w((lambda *s: torch.randn(*s, dtype=torch.bfloat16) * 0.8)(B, Sq, D)),
        "k_cache": _w((lambda *s: torch.randn(*s, dtype=torch.bfloat16) * 0.8)(B, Hkv, Sk, Dh)),
        "v_cache": _w((lambda *s: torch.randn(*s, dtype=torch.bfloat16) * 0.05)(B, Hkv, Sk, Dh)),
        "wq": _w((lambda *s: torch.randn(*s, dtype=torch.bfloat16) * 0.8)(D, Hq * Dh) * (D ** -0.5)),
        "wo": _w((lambda *s: torch.randn(*s, dtype=torch.bfloat16) * 0.05)(Hq * Dh, D) * ((Hq * Dh) ** -0.5)),
    }

def reference(x, k_cache, v_cache, wq, wo):
    B, Sq, D = x.shape
    Hq, Dh = 32, 128
    Hkv = k_cache.shape[1]
    rep = Hq // Hkv
    q = (lambda x, *d: x.permute(*d))((x @ wq).reshape(B, Sq, Hq, Dh), 0, 2, 1, 3)
    k = (lambda x, n, axis: torch.repeat_interleave(x, n, dim=axis))(k_cache, rep, axis=1)
    v = (lambda x, n, axis: torch.repeat_interleave(x, n, dim=axis))(v_cache, rep, axis=1)
    scores = torch.einsum("bhqd,bhkd->bhqk", q, k) * (Dh ** -0.5)
    p = _softmax(scores, axis=-1)
    o = torch.einsum("bhqk,bhkd->bhqd", p, v)
    return (lambda x, *d: x.permute(*d))(o, 0, 2, 1, 3).reshape(B, Sq, Hq * Dh) @ wo
```

```python
import sys, math, struct
from sched import *

NAME = "standalone__gqa_block_cached__near_ridge"
STAMP_OFF = 200 * 1024 * 1024
DUMP_OFF = 64 * 1024 * 1024

def f32(x): return struct.unpack("<I", struct.pack("<f", x))[0]
QSCALE = math.log2(math.e) / math.sqrt(128.0)

KS, VS = 16640, 16896
LDS = 163840
K_SLOT = {1: 0, 0: KS, 2: 2 * KS}
V_WIN = LDS - 3 * VS
V_SLOT = {2: V_WIN, 0: V_WIN + VS, 1: V_WIN + 2 * VS}
A_LO = 2 * KS
X_SLOT = [A_LO + 10240 * i for i in range(4)]
WQ_WIN = A_LO + 40960
WQ_SLOT = [WQ_WIN + VS * i for i in range(3)]
assert WQ_SLOT[2] + VS <= V_SLOT[0]
QX = X_SLOT[2]
O_BASE = KS
WO_A = O_BASE + 40960
WO_B = WO_A + 32768
FLAG = WO_B + 32768
OX = FLAG + 64
assert OX + 4 * 5120 <= V_SLOT[1]
WO_C = LDS - 32768
assert WO_A >= 3 * KS and WO_A + 32768 <= V_WIN

vTID = 0
aK = {(0, 0): 1, (0, 1): 2, (1, 0): 3, (1, 1): 4}
aV = {(0, 0): 5, (0, 1): 6, (1, 0): 7, (1, 1): 8}
vK, vV, vWo = 9, 10, 11
aWo = [12, 13]; aFr = 14
aOw = [15, 16]; aOws = 17; aOr = 18; aOXw = 19; aOXr = 20; vSt = 21; vSt2 = 106; aFl = 23; vPR = [22, 27]
vT = [24, 25, 26, 27]
Qf = lambda qt, s: 28 + (qt * 4 + s) * 4
NM = lambda qt: 76 + 4 * qt
Sr = lambda par, qt, u: (88 if par == 0 else 112) + (qt * 2 + u) * 4
Pr = lambda par, qt: (128 if par == 0 else 140) + 4 * qt
Or = lambda qt, dt: 148 + (qt * 8 + dt) * 4
Lr = lambda qt: 244 + 4 * qt
vWq = [112, 113, 114, 115]; vX = [116, 117, 118, 119, 120]; aWq = [121, 122]; aX = {(0, 0): 123, (0, 1): 124, (1, 0): 125, (1, 1): 126}
aQXw, aQXr = 140, 141
AA = lambda buf, t: buf * 32 + 4 * t
AB = lambda buf, qt: 64 + buf * 12 + 4 * qt
KF = lambda buf, u, s: 96 + buf * 32 + (u * 4 + s) * 4
VF = lambda buf, dt: 160 + buf * 32 + dt * 4
ONES = 224
QORD = [2, 0, 3, 1, 4]
OB = lambda qt, s: 96 + (QORD.index(qt) * 8 + s) * 4
WF = lambda buf, s: buf * 32 + 4 * s
CA = lambda e: 148 + 4 * (e % 8)
PK = lambda n: 212 + 4 * (n % 8)

sW, sB, sG = 3, 44, 45
SRD_X, SRD_K, SRD_V, SRD_WQ, SRD_WO, SRD_WS = 20, 24, 28, 32, 36, 40
sWQ = lambda i: 48 + i
sXo = lambda i: 66 + i
sWO = lambda i: 71 + i
sKV = lambda j: 80 + j
sMK, sMV, sMX, sMX1, sMWO = 88, 89, 90, 91, 92
sST, sPASS, sSC = 93, 94, 95
sT = [4, 5, 6, 7, 8, 9, 10, 11]
sSTAMP = 96

def default_plan():
    p = {}
    for i in range(1, 16): p[f"A{i}"] = [(f"wq{i+2}", 1, 4)]
    for i, n in ((4, "x2"), (8, "x3")):
        for k, ms in enumerate(("01", "23", "4")):
            p[f"A{i+k}"] = [(f"wq{i+k+2}", 1, 3), (f"{n}.{ms}", 13, 3)]
    for k in range(3): p[f"A{12+k}"].append((f"x4.{k}", 17, 3))
    p["A16"] = [("k0", 1, 3), ("v0", 13, 3)]
    p["A17"] = [("k1", 6, 4)]
    for j in range(7): p[f"BK{j}"] = [(f"v{j+1}", 2, 4)]
    for j in range(6): p[f"BV{j}"] = [(f"k{j+2}", 2, 4)]
    p["BV6"] = [("wo0a", 2, 4)]; p["BK7"] = [("wo0b", 2, 4)]; p["BV7"] = [("wo1", 2, 4)]
    p["C0"] = [("wo2", 1, 3), ("wo3", 27, 4)]
    p["C1"] = [("wo4", 18, 4)]
    for jb in range(2, 6): p[f"E{jb}"] = [(f"wo{jb+3}", 2, 4)]
    return p

class Gen:
    def __init__(self, **kw):
        self.o = dict(kv_flags=" nt", w_flags="", st_flags=" sc1", ld_flags="", plan=default_plan(), start=[["wq0", "x0", "wq1"], ["x1", "wq2"], []],
                      stamps=False, force_fb=False, code_pf=True, lo_thr=2.0 ** -40, hi_thr=2.0 ** 40, bk0_at=(0, 6), bv_at=9, c1_at=4, st_want=8)
        self.o.update(kw)
        self.objs = {}
        self.ops = []

    def add(self, op): self.ops.append(op); return op
    def S(self, text, rd=(), wr=(), **k): return self.add(Op("S", text, rd, wr, **k))
    def V(self, text, rd=(), wr=(), **k): return self.add(Op("V", text, rd, wr, **k))
    def T(self, text, rd=(), wr=(), **k): return self.add(Op("T", text, rd, wr, **k))
    def mfma(self, d, a, b, c, ca="a", cb="v"):
        ctxt = "0" if c is None else rtxt("v", c, 4)
        cc = [] if c is None else R("v", c, 4)
        return self.add(Op("M", f"v_mfma_f32_16x16x32_bf16 {rtxt('v', d, 4)}, {rtxt(ca, a, 4)}, {rtxt(cb, b, 4)}, {ctxt}",
                           R(ca, a, 4) + R(cb, b, 4) + cc, R("v", d, 4), srcc=cc))
    def dsr(self, cls, d, n, addr, off, obj, tr=False):
        ins = "ds_read_b64_tr_b16" if tr else {4: "ds_read_b128", 1: "ds_read_b32"}[n]
        assert 0 <= off < 65536, off
        return self.add(Op("D", f"{ins} {rtxt(cls, d, n)}, v{addr} offset:{off}", R("v", addr) + [("t", obj)], R(cls, d, n)))
    def dsw(self, src, n, addr, off, obj):
        ins = {4: "ds_write_b128", 1: "ds_write_b32"}[n]
        assert 0 <= off < 65536
        k = len(self.objs[obj]["w"]); tok = ("w", obj, k); self.objs[obj]["w"].append(tok)
        return self.add(Op("W", f"{ins} v{addr}, {rtxt('v', src, n)} offset:{off}", R("v", addr) + R("v", src, n) + [("t", "free_" + obj)], [tok], note=obj))
    def obj(self, name, lo, size):
        assert lo + size <= LDS
        self.objs[name] = dict(lo=lo, hi=lo + size, w=[])
    def m0(self, obj, mbase, mconst):
        return self.S(f"s_add_u32 m0, s{mbase}, {mconst}", R("s", mbase) + [("t", "free_" + obj)], [("m0", 0)])
    def dma(self, obj, vaddr, srd, soff, ioff, flags, at):
        k = len(self.objs[obj]["w"]); tok = ("g", obj, k); self.objs[obj]["w"].append(tok)
        io = f" offset:{ioff}" if ioff else ""
        g = self.add(Op("G", f"buffer_load_dwordx4 v{vaddr}, s[{srd}:{srd+3}], s{soff} offen{io}{flags} lds",
                        R("v", vaddr) + R("s", soff) + [("m0", 0), ("t", "free_" + obj), ("vmorder", 0)], [tok, ("vmorder", 0)], vmtag=obj, note=obj))
        if at is not None:
            g.pin = at[0]; g.off = at[1]; g.want = 1; at[1] += at[2]
        return g
    def barrier(self, name, publish=(), release=(), free=()):
        rd = []; wr = []; vm = []
        for n in publish:
            rd += self.objs[n]["w"]; wr.append(("t", n))
            if self.objs[n]["w"][0][0] == "g": vm.append(n)
        for n in release:
            rd.append(("rel", n)); wr.append(("t", n))
        todo = self.plan.get(name, [])
        for n in list(free) + [t[0].split(".")[0].rstrip("ab") for t in todo]: wr.append(("t", "free_" + n))
        b = self.add(Op("B", "s_barrier", rd, wr, vmtag=vm))
        b.tag = list(release)
        for (n, off, sp) in todo: self.load(n, [b, off, sp])
        return b

    WO_SLOTS = [WO_A, WO_B, WO_A, WO_C, WO_B, WO_A, WO_C, WO_B, WO_A]
    def load(self, n, at=None):
        wf, kf = self.o["w_flags"], self.o["kv_flags"]
        if n.startswith("wq"):
            i = int(n[2:]); self.obj(n, WQ_SLOT[i % 3], VS)
            self.m0(n, sMV, WQ_SLOT[i % 3])
            for a in range(4): self.dma(n, vWq[a], SRD_WQ, sWQ(i), 1056 * a, wf, at)
        elif n[0] == "x":
            o = n[:2]; jj = int(n[1]); slot = X_SLOT[(2 * jj) % 4]
            if o not in self.objs: self.obj(o, slot, 10240 if jj == 4 else 20480)
            ms = [int(c) for c in (n[3:] or ("012" if jj == 4 else "01234"))]
            for m in ms:
                if m == ms[0] or m == 4: self.m0(o, sMX1 if jj == 4 else sMX, slot + 1024 * (m & 4))
                self.dma(o, vX[m], SRD_X, sXo(jj), 1024 * (m & 3), wf, at)
        elif n[0] == "k":
            j = int(n[1]); self.obj(n, K_SLOT[j % 3], KS)
            for a in range(4):
                self.m0(n, sMK, K_SLOT[j % 3] + 1824 * a); self.dma(n, vK, SRD_K, sKV(j), 256 * a, kf, at)
        elif n[0] == "v":
            j = int(n[1]); self.obj(n, V_SLOT[j % 3], VS)
            for a in range(4):
                self.m0(n, sMV, V_SLOT[j % 3] + 800 * a); self.dma(n, vV, SRD_V, sKV(j), 256 * a, kf, at)
        else:
            jb = int(n[2]); o = n[:3]; slot = self.WO_SLOTS[jb]
            if o not in self.objs: self.obj(o, slot, 32768)
            for half in {"a": (0,), "b": (1,), "": (0, 1)}[n[3:]]:
                self.m0(o, sMWO, slot + 4096 * half)
                for a in range(4):
                    c = 9216 * (4 * half + a) - 1024 * a; t = sT[a % 2]
                    if c: self.S(f"s_add_u32 s{t}, s{sWO(jb)}, {c}", R("s", sWO(jb)) + [("t", "free_" + o)], R("s", t))
                    self.dma(o, vWo, SRD_WO, t if c else sWO(jb), 1024 * a, wf, at)

    def stamp(self, k):
        if not self.o["stamps"]: return
        r = [96, 98, 100, 12, 14, 16][k]
        self.add(Op("B", f"s_waitcnt lgkmcnt(0)\n    s_memrealtime s[{r}:{r+1}]\n    s_waitcnt lgkmcnt(0)", [], [], note="all")).tag = []

    def rd_stage(self, i):
        buf = i & 1; slot = WQ_SLOT[i % 3] - WQ_WIN
        j = i >> 1; xo = f"x{j >> 1}"; xs = X_SLOT[j % 4] - A_LO
        def rb(qt):
            own = 0 if qt < 2 else 1
            off = xs + (qt * 2048 if qt < 2 else 2 * 2048)
            self.dsr("a", AB(buf, qt), 4, aX[(own, i & 1)], off, xo)
        for t in range(8):
            if t < 3: rb(t)
            for v in range(2):
                self.dsr("a", AA(buf, t) + 2 * v, 2, aWq[t >> 2], slot + v * 8448 + (t & 3) * 32, f"wq{i}", tr=True)
    def q_tiles(self):
        return [(2, t) for t in range(4)] + [(qt, t) for qt in range(2) for t in range(8)]
    def mm_stage(self, i):
        buf = i & 1
        for t in range(8):
            for qt in range(3):
                if qt == 2 and t >= 4: continue
                self.mfma(Or(qt, t), AA(buf, t), AB(buf, qt), None if i == 0 else Or(qt, t), cb="a")
    def q_convert(self, qt, s):
        f = Qf(qt, s)
        for u in range(2):
            c = Or(qt, 2 * s + u)
            for i in range(4):
                self.V(f"v_mul_f32 v{c+i}, s{sSC}, v{c+i}", R("v", c + i) + R("s", sSC), R("v", c + i))
            for h in range(2):
                self.V(f"v_cvt_pk_bf16_f32 v{f+2*u+h}, v{c+2*h}, v{c+2*h+1}", R("v", c + 2 * h, 2), R("v", f + 2 * u + h))
        for h in range(2):
            self.T(f"v_permlane16_swap_b32 v{f+h}, v{f+2+h}", [("v", f + h), ("v", f + 2 + h)], [("v", f + h), ("v", f + 2 + h)])

    def phase_a(self):
        for i in range(18):
            pub = [f"wq{i}"]; rel = []; fr = []
            if i % 4 == 0: pub.append(f"x{i >> 2}")
            if i >= 1: rel.append(f"wq{i-1}")
            if i in (4, 8, 12, 16): rel.append(f"x{(i >> 2) - 1}")
            if i == 16: fr.append("qx")
            self.barrier(f"A{i}", pub, rel, fr)
            if i == 0: self.stamp(1)
            self.rd_stage(i)
            if 1 <= i <= 16: self.mm_stage(i - 1)
        self.obj("qx", QX, 8192)
        for t in range(8): self.mfma(Or(1, t), AA(0, t), AB(0, 1), Or(1, t), cb="a")
        for (qt, t) in self.q_tiles():
            for i in ((17,) if qt == 1 else (16, 17)):
                self.mfma(Or(qt, t), AA(i & 1, t), AB(i & 1, qt), Or(qt, t), cb="a")
            if t & 1:
                self.q_convert(qt, t >> 1)
                if qt == 2: self.dsw(Qf(2, t >> 1), 4, aQXw, (t >> 1) * 1024, "qx")
            if (qt, t) == self.o["bk0_at"]:
                self.barrier("BK0", ["qx", "k0"], ["wq17", "x4"])
                self.rd_k(0)
                for s in range(2): self.dsr("v", Qf(2, 2 + s), 4, aQXr, s * 1024, "qx")

    def rd_k(self, h):
        j = h >> 1
        for u in range(2):
            for s in range(4):
                self.dsr("a", KF(h & 1, u, s), 4, aK[(h & 1, s >> 1)], K_SLOT[j % 3] + u * 256 + (s & 1) * 64, f"k{j}")
    def rd_v(self, h):
        j = h >> 1
        for dt in range(8):
            for u in range(2):
                self.dsr("a", VF(h & 1, dt) + 2 * u, 2, aV[(h & 1, dt >> 2)], V_SLOT[j % 3] - V_WIN + 512 * u + 32 * (dt & 3), f"v{j}", tr=True)
    def qts(self, h):
        if h & 1: return [0, 1]
        return {14: [2, 0, 1], 0: [0, 2, 1]}.get(h, [0, 1, 2])
    def qk(self, h, hook=None):
        par = h & 1; n = 0
        for qt in self.qts(h):
            for u in range(2):
                d = Sr(par, qt, u)
                for s in range(4):
                    self.mfma(d, KF(par, u, s), Qf(qt, s), NM(qt) if s == 0 else d)
                    n += 1
                    if hook: hook(n)
                for i in range(4):
                    self.T(f"v_exp_f32 v{d+i}, v{d+i}", R("v", d + i), R("v", d + i))
                for hh in range(2):
                    p = Pr(par, qt) + 2 * u + hh
                    self.V(f"v_cvt_pk_bf16_f32 v{p}, v{d+2*hh}, v{d+2*hh+1}", R("v", d + 2 * hh, 2), R("v", p))
    def pv(self, h, hook=None, only=None):
        par = h & 1; n = 0
        for qt in (only or self.qts(h)):
            first = h == 0
            self.mfma(Lr(qt), ONES, Pr(par, qt), None if first else Lr(qt)); n += 1
            if hook: hook(n, qt, -1)
            for dt in range(8):
                self.mfma(Or(qt, dt), VF(par, dt), Pr(par, qt), None if first else Or(qt, dt)); n += 1
                if hook: hook(n, qt, dt)

    def rd_wo(self, jb):
        slot = self.WO_SLOTS[jb]
        base = 1 if slot == WO_C else 0
        org = [WO_A, WO_C][base]
        for s in range(8):
            for u in range(2):
                self.dsr("a", WF(jb % 3, s) + 2 * u, 2, aWo[base], slot - org + (32 * s + 16 * u) * 128, f"wo{jb}", tr=True)

    def o_finish(self, qt, s, rinv, dst, addr, off, obj, partner=None):
        for u in range(2):
            c = Or(qt, 2 * s + u)
            for i in range(4):
                if partner is not None:
                    q = partner + (2 * s + u) * 4 + i
                    self.V(f"v_add_f32 v{c+i}, v{c+i}, v{q}", [("v", c + i), ("v", q)], R("v", c + i))
                self.V(f"v_mul_f32 v{c+i}, v{rinv}, v{c+i}", [("v", c + i), ("v", rinv)], R("v", c + i))
            for h in range(2):
                self.V(f"v_cvt_pk_bf16_f32 v{dst+2*u+h}, v{c+2*h}, v{c+2*h+1}", R("v", c + 2 * h, 2), R("v", dst + 2 * u + h))
        self.dsw(dst, 4, addr, off, obj)

    def phase_b(self):
        self.stamp(2)
        self.rd_k(1)
        self.qk(0)
        self.barrier("BV0", ["v0"], ["qx"])
        self.rd_v(0)
        for h in range(1, 16):
            j = h >> 1
            self.qk(h)
            if h & 1:
                if j + 1 < 8:
                    self.barrier(f"BK{j+1}", [f"k{j+1}"], [f"k{j}"])
                    self.rd_k(h + 1)
                self.rd_v(h)
                if h < 15: self.pv(h - 1)
            else:
                self.rd_k(h + 1)
                def hook(n, qt, dt, j=j, h=h):
                    if n == self.o["bv_at"]:
                        self.barrier(f"BV{j}", [f"v{j}"], [f"v{j-1}"], ["o", "o2", "ox", "flag"] if j == 7 else [])
                        self.rd_v(h)
                self.pv(h - 1, hook)
        self.obj("o", O_BASE, 40960); self.obj("ox", OX, 4 * 5120); self.obj("flag", FLAG, 16)
        self.objs["o2"] = dict(lo=0, hi=0, w=[])
        PART = 88; PL = 104; RI = [24, 25, 26]
        def hook_sh(n, qt, dt):
            if dt == -1: self.dsw(Lr(2), 1, aOXw, 4096, "ox")
            if dt >= 4: self.dsw(Or(2, dt), 4, aOXw, (dt - 4) * 1024, "ox")
        self.pv(14, hook_sh, [2])
        self.pv(14, None, [0])
        self.barrier("BX", ["ox", "wo0"], ["k7"])
        self.dsr("v", PL, 1, aOXr, 4096, "ox")
        for k in range(4): self.dsr("v", PART + 4 * k, 4, aOXr, k * 1024, "ox")
        self.rd_wo(0)
        self.V(f"v_add_f32 v{PL}, v{PL}, v{Lr(2)}", [("v", PL), ("v", Lr(2))], R("v", PL))
        self.T(f"v_rcp_f32 v{RI[2]}, v{PL}", R("v", PL), R("v", RI[2]))
        for s in range(2): self.o_finish(2, s, RI[2], [128, 136][s], aOws, s * 1024, "o", partner=PART)
        def hook15(n, qt, dt):
            if dt == -1: self.T(f"v_rcp_f32 v{RI[qt]}, v{Lr(qt)}", R("v", Lr(qt)), R("v", RI[qt]))
            if dt >= 0 and dt & 1:
                s = dt >> 1
                dst = [108, 112, 116, 228, 120, 124, 88, 92][qt * 4 + s]
                self.o_finish(qt, s, RI[qt], dst, aOw[s >> 1], qt * 8192 + (s & 1) * 1024, ["o", "o2"][qt])
            if qt == 1 and dt == -1:
                t = 105
                self.V(f"v_max3_f32 v{t}, v{Lr(0)}, v{Lr(1)}, v{PL}", [("v", Lr(0)), ("v", Lr(1)), ("v", PL)], R("v", t))
                self.V(f"v_cmp_lt_f32 vcc, {hex(f32(self.o['hi_thr']))}, v{t}", R("v", t), [("vcc", 0)])
                self.S(f"s_mov_b64 s[6:7], vcc", [("vcc", 0)], R("s", 6, 2))
                self.V(f"v_min3_f32 v{t}, v{Lr(0)}, v{Lr(1)}, v{PL}", [("v", Lr(0)), ("v", Lr(1)), ("v", PL)], R("v", t))
                self.V(f"v_cmp_gt_f32 vcc, {hex(f32(self.o['lo_thr']))}, v{t}", R("v", t), [("vcc", 0)])
                self.S(f"s_or_b64 s[6:7], s[6:7], vcc", [("vcc", 0)] + R("s", 6, 2), R("s", 6, 2))
                self.S(f"s_or_b32 s6, s6, s7", R("s", 6, 2), R("s", 6))
                self.V(f"v_mov_b32 v{t}, s6", R("s", 6), R("v", t))
                self.dsw(t, 1, aFl, 0, "flag")
        self.pv(15, hook15, [0])
        self.pv(14, None, [1])
        self.barrier("C0", ["o", "wo1"], ["ox", "wo0", "v7"])
        for qt in QORD[:3]:
            self.rd_o(qt, "o")
            if qt == QORD[0]: self.rd_wo(1)
        self.pv(15, hook15, [1])

    def rd_o(self, qt, obj):
        for s in range(8): self.dsr("a", OB(qt, s), 4, aOr, (qt * 8 + s) * 1024, obj)

    def phase_c(self):
        self.stamp(3)
        ent = [(jb, qt) for qt in QORD for jb in range(2)] + [(jb, qt) for jb in range(2, 9) for qt in range(5)]
        for e, (jb, qt) in enumerate(ent):
            if e == self.o["c1_at"]:
                self.barrier("C1", ["o2", "flag", "wo2"], ["wo1"])
                for q in QORD[3:]: self.rd_o(q, "o2")
                self.dsr("v", 100, 4, aFr, 0, "flag")
                self.rd_wo(2)
                self.V("v_or3_b32 v100, v100, v101, v102", R("v", 100, 3), R("v", 100))
                self.V("v_or_b32 v100, v100, v103", [("v", 100), ("v", 103)], R("v", 100))
                self.V("v_readfirstlane_b32 s8, v100", R("v", 100), R("s", 8))
                self.V(f"v_lshlrev_b32 v{vSt2}, 3, v0", R("v", 0) + R("s", 8), R("v", vSt2))
            if e == 10:
                fb = "s_or_b32 s8, s8, 1\n    " if self.o["force_fb"] else ""
                self.add(Op("B", f"{fb}s_andn2_b32 s8, s8, s{sPASS}\n    s_cbranch_scc1 L_fallback", R("s", 8), R("s", 8)))
            if e >= 10 and qt == 0 and jb + 1 < 9:
                self.barrier(f"E{jb}", [f"wo{jb+1}"], [f"wo{jb}"] + (["o", "o2"] if jb == 2 else []))
                self.rd_wo(jb + 1)
            d = CA(e)
            for s in range(8):
                self.mfma(d, WF(jb % 3, s), OB(qt, s), None if s == 0 else d, cb="a")
            n = e >> 1; p = PK(n) + 2 * (e & 1)
            for h in range(2):
                self.V(f"v_cvt_pk_bf16_f32 v{p+h}, v{d+2*h}, v{d+2*h+1}", R("v", d + 2 * h, 2), R("v", p + h))
            if e & 1 or e == 44:
                t = 10 + (n & 1)
                self.S(f"s_add_u32 s{t}, s{sST}, {n*65536}", R("s", sST), R("s", t))
                w, va = (4, vSt) if e & 1 else (2, vSt2)
                self.add(Op("G", f"buffer_store_dwordx{w} {rtxt('v', PK(n), w)}, v{va}, s[{SRD_WS}:{SRD_WS+3}], s{t} offen{self.o['st_flags']}",
                            R("v", PK(n), w) + R("v", va) + R("s", t), [], vmtag="st", want=self.o["st_want"]))

    def prologue(self):
        P = []
        def S(t, wr=(), rd=()): P.append(Op("S", t, rd, wr))
        def V(t, d=None, rd=()):
            regs = [("v", int(x)) for x in re.findall(r"\bv(\d+)\b", t)]
            sregs = [("s", int(x)) for x in re.findall(r"\bs(\d+)\b", t)]
            if t.startswith("v_readfirstlane"): P.append(Op("V", t, regs, sregs))
            else: P.append(Op("V", t, regs[1:] + sregs, regs[:1]))
        def Lb(t): P.append(Op("L", t))
        S("s_cmp_ge_u32 s2, 256"); S("s_cbranch_scc1 L_end")
        for d, off in ((SRD_WQ, 24), (SRD_X, 0)): S(f"s_load_dwordx2 s[{d}:{d+1}], s[0:1], {off}")
        S("s_lshr_b32 s47, s2, 3")
        if self.o["code_pf"]:
            S("s_getpc_b64 s[64:65]"); S("s_mul_i32 s48, s47, 1280")
            V("v_lshl_add_u32 v26, v0, 3, s48")
            P.append(Op("G", "global_load_dword v255, v26, s[64:65]", R("v", 26), [], vmtag="pf"))
        if self.o["stamps"]: S("s_memrealtime s[96:97]")
        for d, off in ((SRD_K, 8), (SRD_V, 16), (SRD_WO, 32), (SRD_WS, 56)): S(f"s_load_dwordx2 s[{d}:{d+1}], s[0:1], {off}")
        V("v_lshrrev_b32 v24, 6, v0")
        S(f"s_and_b32 s46, s2, 7"); V(f"v_readfirstlane_b32 s{sW}, v24")
        S(f"s_and_b32 s48, s47, 1"); S(f"s_lshl_b32 s46, s46, 1"); S(f"s_or_b32 s{sG}, s46, s48"); S(f"s_lshr_b32 s{sB}, s47, 1")
        S(f"s_cmp_ge_u32 s{sB}, 9"); S("s_cselect_b32 s47, 1, 0"); S("s_cselect_b32 s46, 9, 0"); S(f"s_sub_u32 s10, s{sB}, s46")
        S(f"s_lshl2_add_u32 s9, s48, s10"); S("s_cmp_ge_u32 s9, 9"); S("s_cselect_b32 s46, 9, 0"); S("s_sub_u32 s9, s9, s46")
        S(f"s_lshl_b32 s11, s{sG}, 9"); S(f"s_lshl_b32 s46, s47, 18"); S(f"s_add_u32 s11, s11, s46")
        S(f"s_lshl_b32 s46, s9, 19"); S(f"s_add_u32 s{sWQ(0)}, s46, s11"); S(f"s_xor_b32 s{sWQ(1)}, s{sWQ(0)}, 0x40000")
        S(f"s_mul_i32 s{sMV}, s{sW}, 4224"); S(f"s_mul_i32 s{sMX}, s{sW}, 5120")
        S(f"s_lshr_b32 s4, s{sW}, 1"); S(f"s_and_b32 s46, s{sW}, 1")
        S(f"s_add_u32 s5, s9, s4"); S("s_cmp_ge_u32 s5, 9"); S("s_cselect_b32 s6, 9, 0"); S("s_sub_u32 s5, s5, s6")
        S(f"s_mul_i32 s8, s{sB}, 92160"); S("s_lshl_b32 s5, s5, 7"); S(f"s_add_u32 s{sXo(0)}, s5, s8")
        for d, n in ((SRD_WQ, 4718592), (SRD_X, 1474560)): S(f"s_mov_b32 s{d+2}, {n}"); S(f"s_mov_b32 s{d+3}, 0x20000")
        S(f"s_mov_b32 s{sPASS}, 0")
        Lb("L_restart:")
        S(f"s_lshr_b32 s4, s{sW}, 1")
        V("v_and_b32 v25, 63, v0")
        V("v_lshrrev_b32 v24, 5, v25"); V("v_lshlrev_b32 v24, 17, v24"); V("v_and_b32 v26, 31, v25"); V("v_lshl_add_u32 v24, v26, 4, v24")
        S("s_lshl_b32 s5, s46, 16"); S("s_lshl_b32 s6, s4, 15"); S("s_add_u32 s5, s5, s6")
        V(f"v_add_u32 v{vWq[0]}, s5, v24")
        for a in range(1, 4): V(f"v_add_u32 v{vWq[a]}, {(8192-1056)*a}, v{vWq[0]}")
        V("v_lshrrev_b32 v24, 3, v25"); V("v_mul_u32_u24 v24, 1152, v24")
        V("v_lshrrev_b32 v26, 4, v25"); S("s_lshl_b32 s5, s46, 2"); V("v_or_b32 v26, s5, v26"); V("v_and_b32 v27, 7, v25"); V("v_xor_b32 v26, v26, v27")
        V("v_lshl_add_u32 v26, v26, 4, v24"); S("s_mul_i32 s5, s46, 46080"); V(f"v_add_u32 v{vX[0]}, s5, v26"); V(f"v_xor_b32 v27, 64, v{vX[0]}")
        for m in range(1, 5): V(f"v_add_u32 v{vX[m]}, {9216*m - 1024*(m&3)}, v{27 if m & 1 else vX[0]}")
        S("s_waitcnt lgkmcnt(0)")
        first = P; P = []
        S(f"s_cmp_lg_u32 s{sPASS}, 0"); S("s_cbranch_scc1 L_known")
        def wrap(dst, prev, step, lim, span):
            S(f"s_add_u32 s{dst}, s{prev}, {step}"); S(f"s_cmp_ge_u32 s{dst}, s{lim}"); S(f"s_cselect_b32 s5, {span}, 0"); S(f"s_sub_u32 s{dst}, s{dst}, s5")
        S(f"s_add_u32 s11, s11, {9 << 19}"); S("s_add_u32 s7, s8, 1152")
        wrap(sWQ(2), sWQ(0), 1 << 19, 11, 9 << 19); wrap(sXo(1), sXo(0), 256, 7, 1152)
        Lb("L_known:")
        second = P; P = []
        S(f"s_cmp_lg_u32 s{sPASS}, 0"); S("s_cbranch_scc1 L_known2")
        S(f"s_xor_b32 s{sWQ(3)}, s{sWQ(2)}, 0x40000")
        for j in range(2, 9):
            wrap(sWQ(2 * j), sWQ(2 * j - 2), 1 << 19, 11, 9 << 19); S(f"s_xor_b32 s{sWQ(2*j+1)}, s{sWQ(2*j)}, 0x40000")
        for j in (2, 3): wrap(sXo(j), sXo(j - 1), 256, 7, 1152)
        S(f"s_lshl_b32 s6, s9, 7"); S("s_add_u32 s6, s6, s8"); wrap(sXo(4), 6, 1024, 7, 1152)
        S(f"s_mul_i32 s5, s4, 18432"); S(f"s_add_u32 s{sXo(4)}, s{sXo(4)}, s5")
        S(f"s_mul_i32 s7, s{sG}, 294912"); S("s_lshl_b32 s6, s10, 7"); S(f"s_add_u32 s{sWO(0)}, s6, s7"); S("s_add_u32 s7, s7, 1152")
        for j in range(1, 9): wrap(sWO(j), sWO(j - 1), 128, 7, 1152)
        S(f"s_lshl_b32 s5, s{sB}, 4"); S(f"s_or_b32 s5, s5, s{sG}"); S(f"s_lshl_b32 s{sKV(0)}, s5, 17")
        for j in range(1, 8): S(f"s_add_u32 s{sKV(j)}, s{sKV(0)}, {16384*j}")
        S(f"s_mul_i32 s{sST}, s{sB}, {23*65536}"); S(f"s_lshl_b32 s5, s{sG}, 12"); S(f"s_add_u32 s{sST}, s{sST}, s5")
        S(f"s_xor_b32 s{sMK}, s46, s4"); S(f"s_lshl3_add_u32 s{sMK}, s4, s{sMK}"); S(f"s_mul_i32 s{sMK}, s{sMK}, 1040")
        S(f"s_mul_i32 s{sMX1}, s46, 5120"); S("s_lshl_b32 s5, s4, 11"); S(f"s_add_u32 s{sMX1}, s{sMX1}, s5")
        S(f"s_lshl_b32 s{sMWO}, s{sW}, 13")
        S(f"s_mov_b32 s{sSC}, {hex(f32(QSCALE))}")
        for d, n in ((SRD_K, 33554432), (SRD_V, 33554432), (SRD_WO, 4718592), (SRD_WS, 268435456)): S(f"s_mov_b32 s{d+2}, {n}"); S(f"s_mov_b32 s{d+3}, 0x20000")
        for i in range(12): V(f"v_mov_b32 v{NM(0)+i}, 0")
        Lb("L_known2:")
        V("v_lshrrev_b32 v26, 4, v25"); V("v_and_b32 v27, 15, v25"); V("v_lshlrev_b32 v27, 4, v27")
        V(f"v_lshl_add_u32 v{vK}, v26, 12, v27"); S(f"s_lshl_b32 s5, s{sW}, 10"); V(f"v_add_u32 v{vK}, s5, v{vK}")
        V(f"v_lshl_add_u32 v{vV}, v26, 11, v27"); S("s_lshl_b32 s5, s46, 10"); S("s_lshl_b32 s6, s4, 13"); S("s_add_u32 s5, s5, s6"); V(f"v_add_u32 v{vV}, s5, v{vV}")
        V("v_bfe_u32 v27, v25, 1, 2"); V("v_xor_b32 v27, v27, v26"); V("v_lshlrev_b32 v27, 5, v27"); V(f"v_and_b32 v{vWo}, 1, v25")
        V(f"v_lshl_add_u32 v{vWo}, v{vWo}, 4, v27"); V(f"v_add_u32 v{vWo}, v{vWo}, v24"); S(f"s_mul_i32 s5, s{sW}, 73728"); V(f"v_add_u32 v{vWo}, s5, v{vWo}")
        V("v_bfe_u32 v24, v25, 2, 2"); V("v_bfe_u32 v26, v25, 4, 1"); V("v_lshrrev_b32 v27, 5, v25")
        V("v_and_b32 v128, 3, v25"); V("v_lshlrev_b32 v128, 3, v128"); V("v_and_b32 v129, 15, v25")
        V("v_lshl_add_u32 v130, v26, 2, v24"); V("v_mul_u32_u24 v131, 1056, v130"); V("v_add_u32 v131, v131, v128")
        S("s_lshl_b32 s5, s46, 7"); S("s_xor_b32 s6, s5, 128")
        V("v_lshl_add_u32 v132, v27, 9, v131"); S("s_lshl_b32 s7, s4, 8"); S(f"s_add_u32 s7, s7, {WQ_WIN}")
        S("s_add_u32 s8, s7, s5"); V(f"v_add_u32 v{aWq[0]}, s8, v132"); S("s_add_u32 s8, s7, s6"); V(f"v_add_u32 v{aWq[1]}, s8, v132")
        V("v_lshrrev_b32 v132, 4, v25"); V("v_bfe_u32 v133, v25, 1, 3"); V("v_xor_b32 v132, v132, v133"); S("s_lshl_b32 s7, s47, 2"); V("v_xor_b32 v132, s7, v132")
        V("v_lshlrev_b32 v132, 4, v132"); V("v_lshl_add_u32 v132, v129, 7, v132")
        V(f"v_add_u32 v{aX[(1,0)]}, {A_LO}, v132"); V(f"v_xor_b32 v132, 64, v132"); V(f"v_add_u32 v{aX[(1,1)]}, {A_LO}, v132")
        S("s_mul_i32 s7, s46, 6144"); V(f"v_add_u32 v{aX[(0,0)]}, s7, v{aX[(1,0)]}"); V(f"v_add_u32 v{aX[(0,1)]}, s7, v{aX[(1,1)]}")
        V("v_lshl_add_u32 v132, v27, 8, v131")
        S("s_mul_i32 s7, s46, 8448"); S("s_sub_u32 s8, 8448, s7")
        for hh in range(2):
            for z in range(2):
                S(f"s_add_u32 s9, s{7+hh}, s{5+z}"); S(f"s_add_u32 s9, s9, {V_WIN}"); V(f"v_add_u32 v{aV[(hh,z)]}, s9, v132")
        V("v_lshrrev_b32 v132, 1, v24"); V("v_xor_b32 v133, v132, v24"); V("v_and_b32 v133, 1, v133"); V("v_lshl_add_u32 v133, v132, 3, v133")
        V("v_and_b32 v132, 3, v25"); V("v_lshl_add_u32 v133, v132, 1, v133"); V("v_mul_u32_u24 v133, 1040, v133")
        V("v_lshl_add_u32 v132, v26, 1, v27"); V("v_lshl_add_u32 v133, v132, 4, v133")
        S("s_lshl_b32 s7, s46, 9"); S("s_xor_b32 s8, s7, 512")
        for hh in range(2):
            for z in range(2):
                S(f"s_add_u32 s9, s{7+hh}, s{5+z}"); V(f"v_add_u32 v{aK[(hh,z)]}, s9, v133")
        V("v_lshrrev_b32 v132, 2, v25"); V("v_bfe_u32 v133, v25, 3, 2"); V(f"v_xor_b32 v133, s{sW}, v133"); V("v_lshlrev_b32 v133, 5, v133")
        V("v_lshl_add_u32 v133, v132, 7, v133"); V(f"v_add_u32 v133, v133, v128")
        V(f"v_add_u32 v{aWo[0]}, {WO_A}, v133"); V(f"v_add_u32 v{aWo[1]}, {WO_C}, v133"); V(f"v_mov_b32 v{aFr}, {FLAG}")
        V("v_lshlrev_b32 v132, 4, v25"); V(f"v_add_u32 v{aOr}, {O_BASE}, v132")
        S("s_lshl_b32 s7, s4, 12"); S("s_lshl_b32 s8, s46, 11"); S("s_add_u32 s9, s7, s8"); S("s_add_u32 s10, s9, 16384"); V(f"v_add_u32 v{aOws}, s10, v{aOr}")
        S("s_mul_i32 s10, s46, 24576"); S("s_add_u32 s9, s9, s10"); V(f"v_add_u32 v{aOw[0]}, s9, v{aOr}"); S("s_xor_b32 s9, s9, 2048"); V(f"v_add_u32 v{aOw[1]}, s9, v{aOr}")
        S(f"s_mul_i32 s7, s{sW}, 5120"); S(f"s_add_u32 s7, s7, {OX}"); V(f"v_add_u32 v{aOXw}, s7, v132")
        S(f"s_xor_b32 s8, s{sW}, 1"); S("s_mul_i32 s7, s8, 5120"); S(f"s_add_u32 s7, s7, {OX}"); V(f"v_add_u32 v{aOXr}, s7, v132")
        S(f"s_lshl_b32 s7, s{sW}, 11"); S(f"s_add_u32 s7, s7, {QX}"); V(f"v_add_u32 v{aQXw}, s7, v132")
        S("s_lshl_b32 s7, s8, 11"); S(f"s_add_u32 s7, s7, {QX}"); V(f"v_add_u32 v{aQXr}, s7, v132")
        V(f"v_lshlrev_b32 v{vSt}, 4, v0")
        S(f"s_lshl_b32 s7, s{sW}, 2"); S(f"s_add_u32 s7, s7, {FLAG}"); V(f"v_mov_b32 v{aFl}, s7")
        V("v_mov_b32 v132, 0x3f803f80")
        for i in range(4): P.append(Op("V", f"v_accvgpr_write_b32 a{ONES+i}, v132", R("v", 132), R("a", ONES + i)))
        return first, second, P

    def fallback(self):
        L = []
        A = L.append
        A("L_fallback:")
        A("s_waitcnt vmcnt(0) lgkmcnt(0)"); A("s_barrier")
        for qt in range(3): A(f"v_mov_b32 v{NM(qt)}, 0xff800000")
        A(f"s_mov_b32 s4, s{sKV(0)}"); A("s_mov_b32 s5, 0")
        A("L_fb_loop:")
        for a in range(4):
            A(f"s_add_u32 m0, s{sMK}, {1824*a}"); A("s_nop 0")
            A(f"buffer_load_dwordx4 v{vK}, s[{SRD_K}:{SRD_K+3}], s4 offen offset:{256*a} lds")
        A("s_waitcnt vmcnt(0)"); A("s_barrier")
        for hh in range(2):
            for u in range(2):
                for s in range(4):
                    A(f"ds_read_b128 a[{KF(hh,u,s)}:{KF(hh,u,s)+3}], v{aK[(hh, s>>1)]} offset:{u*256+(s&1)*64}")
        A("s_waitcnt lgkmcnt(0)"); A("s_barrier")
        for hh in range(2):
            for qt in range(3):
                for u in range(2):
                    d = Sr(0, qt, u)
                    for s in range(4):
                        c = "0" if s == 0 else f"v[{d}:{d+3}]"
                        A(f"v_mfma_f32_16x16x32_bf16 v[{d}:{d+3}], a[{KF(hh,u,s)}:{KF(hh,u,s)+3}], v[{Qf(qt,s)}:{Qf(qt,s)+3}], {c}")
            A("s_nop 7"); A("s_nop 1")
            for qt in range(3):
                d = Sr(0, qt, 0)
                for i in range(0, 8, 2): A(f"v_max3_f32 v{NM(qt)}, v{NM(qt)}, v{d+i}, v{d+i+1}")
            A("s_nop 1")
        A("s_add_u32 s4, s4, 16384"); A("s_add_u32 s5, s5, 1"); A("s_cmp_lt_u32 s5, 8"); A("s_cbranch_scc1 L_fb_loop")
        for qt in range(3):
            m = NM(qt)
            for sw in ("16", "32"):
                A(f"v_mov_b32 v{m+1}, v{m}"); A("s_nop 1"); A(f"v_permlane{sw}_swap_b32 v{m}, v{m+1}"); A("s_nop 1"); A(f"v_max_f32 v{m}, v{m}, v{m+1}")
            A(f"v_sub_f32 v{m}, 0, v{m}")
            for i in range(1, 4): A(f"v_mov_b32 v{m+i}, v{m}")
        A(f"s_mov_b32 s{sPASS}, -1")
        A("s_branch L_restart")
        return L

    def check_lds(self, seq):
        touched = []; released = set()
        for o in seq:
            if o.kind == "B": released |= set(o.tag)
            if o.kind in "GW" and o.note in self.objs:
                x = self.objs[o.note]
                for n in touched:
                    y = self.objs[n]
                    if n != o.note and x["lo"] < y["hi"] and y["lo"] < x["hi"]:
                        assert n in released, f"LDS overlap: {o.note} written while {n} live"
                if o.note not in touched: touched.append(o.note)

    def add_prof(self, seq):
        out = []; n = 0; self.marks = []; m = 0
        for o in seq:
            if o.kind == "M": m += 1
            if o.kind == "B" and o.text == "s_barrier":
                j = len(out)
                if out[-1].text.startswith("s_waitcnt"): j -= 1
                pre = []
                if n:
                    pre = [Op("V", f"v_writelane_b32 v{vPR[0]}, s18, {n-1}"), Op("V", f"v_writelane_b32 v{vPR[1]}, s0, {n-1}")]
                out[j:j] = pre + [Op("S", "s_memtime s[18:19]")]
                out.append(o); out.append(Op("S", "s_memtime s[0:1]"))
                self.marks.append(m); n += 1
            else: out.append(o)
        out += [Op("V", f"v_writelane_b32 v{vPR[0]}, s18, {n-1}"), Op("V", f"v_writelane_b32 v{vPR[1]}, s0, {n-1}"),
                Op("S", "s_memtime s[18:19]"), Op("S", "s_waitcnt lgkmcnt(0)"), Op("V", f"v_writelane_b32 v{vPR[0]}, s18, {n}"), Op("V", f"v_writelane_b32 v{vPR[1]}, s18, {n}"),
                Op("S", f"s_lshl_b32 s4, s2, 11"), Op("S", f"s_add_u32 s4, s4, {STAMP_OFF + (1 << 20)}"), Op("V", "v_lshlrev_b32 v24, 2, v0"), Op("S", "s_nop 4"),
                Op("G", f"buffer_store_dword v{vPR[0]}, v24, s[{SRD_WS}:{SRD_WS+3}], s4 offen"), Op("G", f"buffer_store_dword v{vPR[1]}, v24, s[{SRD_WS}:{SRD_WS+3}], s4 offen offset:1024")]
        self.marks.append(m)
        return out

    def k1(self):
        first, second, rest = self.prologue()
        self.plan = self.o["plan"]
        parts = []
        for names in self.o["start"]:
            self.ops = []
            for n in names: self.load(n)
            parts.append(self.ops)
        self.ops = []
        self.phase_a(); self.phase_b(); self.phase_c()
        body = schedule(self.ops)
        seq = first + parts[0] + second + parts[1] + rest + parts[2] + body
        self.check_lds(seq)
        seq = insert_waits(seq)
        if self.o.get("prof"): seq = self.add_prof(seq)
        seq, nops = fix_hazards(seq)
        self.stats = dict(n=len(seq), nops=nops, est=estimate(seq), mfma=sum(o.kind == "M" for o in seq))
        self.seq = seq
        L = [("" if o.kind == "L" else "    ") + o.text for o in seq]
        if self.o["stamps"]:
            L += ["s_memrealtime s[14:15]", "s_waitcnt vmcnt(0)", "s_memrealtime s[16:17]", "s_waitcnt lgkmcnt(0)"]
            for i, r in enumerate([96, 97, 98, 99, 100, 101, 12, 13, 14, 15, 16, 17]): L.append(f"v_mov_b32 v{28+i}, s{r}")
            L += ["s_lshl_b32 s4, s2, 6", f"s_add_u32 s4, s4, {STAMP_OFF}", "v_cmp_eq_u32 vcc, 0, v0", "s_and_saveexec_b64 s[6:7], vcc", "s_cbranch_execz L_end", "v_mov_b32 v24, 0"]
            for i in range(3): L.append(f"buffer_store_dwordx4 v[{28+4*i}:{31+4*i}], v24, s[{SRD_WS}:{SRD_WS+3}], s4 offen offset:{16*i}")
        L += ["L_end:", "    s_endpgm"]
        L += [("" if x.endswith(":") else "    ") + x for x in self.fallback()]
        return L

    def k2(self):
        L = []; A = L.append
        fl = self.o["ld_flags"]
        A("s_cmp_ge_u32 s2, 368"); A("s_cbranch_scc1 L_end2")
        A("s_load_dwordx2 s[4:5], s[0:1], 40"); A("s_load_dwordx2 s[6:7], s[0:1], 56")
        if self.o["stamps"]: A("s_memrealtime s[40:41]")
        A(f"s_mov_b32 s3, {(2**32 + 22)//23}"); A("s_mul_hi_u32 s20, s2, s3"); A("s_mul_i32 s3, s20, 23"); A("s_sub_u32 s21, s2, s3")
        A("s_lshl_b32 s22, s2, 16")
        A("s_cmp_eq_u32 s21, 22"); A("s_cselect_b32 s23, 3, 4")
        A("v_lshlrev_b32 v1, s23, v0")
        A("s_waitcnt lgkmcnt(0)")
        A("s_mov_b32 s8, s6"); A("s_and_b32 s9, s7, 0xffff"); A("s_mov_b32 s10, 268435456"); A("s_mov_b32 s11, 0x20000")
        for g in range(16):
            if g: A(f"s_add_u32 s22, s22, 4096")
            A(f"buffer_load_dwordx4 v[{8+4*g}:{11+4*g}], v1, s[8:11], s22 offen{fl}")
        A("s_mov_b32 s12, s4"); A("s_and_b32 s13, s5, 0xffff"); A("s_mov_b32 s14, 1474560"); A("s_mov_b32 s15, 0x20000")
        A("s_cmp_ge_u32 s20, 9"); A("s_cselect_b32 s3, 9, 0"); A("s_sub_u32 s24, s20, s3")
        A("s_mul_i32 s25, s20, 92160")
        for k in range(2):
            A(f"s_lshl_b32 s26, s21, 1"); A(f"s_add_u32 s26, s26, {k}")
            A("s_mul_i32 s27, s26, 52"); A("s_lshr_b32 s27, s27, 8"); A("s_mul_i32 s3, s27, 5"); A("s_sub_u32 s26, s26, s3")
            A("s_lshl_b32 s3, s21, 2"); A("s_lshr_b32 s3, 0x41302, s3"); A("s_and_b32 s3, s3, 15"); A("s_cmp_lt_u32 s21, 5")
            A("s_cselect_b32 s26, s3, s26"); A(f"s_cselect_b32 s27, {k}, s27")
            A("s_add_u32 s27, s27, s24"); A("s_cmp_ge_u32 s27, 9"); A("s_cselect_b32 s3, 9, 0"); A("s_sub_u32 s27, s27, s3")
            A("s_lshl_b32 s27, s27, 7"); A("s_mul_i32 s26, s26, 18432"); A("s_add_u32 s26, s26, s27"); A(f"s_add_u32 s{28+k}, s26, s25")
        A("v_and_b32 v2, 15, v0"); A("v_mul_u32_u24 v2, 1152, v2"); A("v_lshrrev_b32 v3, 4, v0"); A("v_lshl_add_u32 v2, v3, 3, v2")
        for g in range(16):
            A(f"s_waitcnt vmcnt({15-g})")
            for j in range(4):
                r = 8 + 4 * g + j
                if g == 0:
                    A(f"v_lshlrev_b32 v{72+2*j}, 16, v{r}"); A(f"v_and_b32 v{73+2*j}, 0xffff0000, v{r}")
                else:
                    A(f"v_lshlrev_b32 v4, 16, v{r}"); A(f"v_and_b32 v5, 0xffff0000, v{r}")
                    A(f"v_add_f32 v{72+2*j}, v{72+2*j}, v4"); A(f"v_add_f32 v{73+2*j}, v{73+2*j}, v5")
        for j in range(4): A(f"v_cvt_pk_bf16_f32 v{8+j}, v{72+2*j}, v{73+2*j}")
        A("buffer_store_dwordx2 v[8:9], v2, s[12:15], s28 offen")
        A("s_cmp_eq_u32 s21, 22"); A("s_cbranch_scc1 L_skip2")
        A("buffer_store_dwordx2 v[10:11], v2, s[12:15], s29 offen")
        A("L_skip2:")
        if self.o["stamps"]:
            A("s_waitcnt vmcnt(0)"); A("s_memrealtime s[42:43]"); A("s_waitcnt lgkmcnt(0)")
            for i in range(4): A(f"v_mov_b32 v{12+i}, s{40+i}")
            A("s_lshl_b32 s3, s2, 6"); A(f"s_add_u32 s3, s3, {STAMP_OFF + 48}")
            A("v_cmp_eq_u32 vcc, 0, v0"); A("s_and_saveexec_b64 s[16:17], vcc"); A("s_cbranch_execz L_end2"); A("v_mov_b32 v1, 0")
            A("buffer_store_dwordx4 v[12:15], v1, s[8:11], s3 offen")
        A("L_end2:"); A("s_endpgm")
        return [("" if x.endswith(":") else "    ") + x for x in L]

    def text(self):
        head = open("cdna_kernels/" + NAME + ".s.ref").read().splitlines()[:9]
        L = head + [f"; @launch kernel=gqa_main_kernel grid=(256,1,1) block=(256,1,1) lds={LDS}",
                    "; @launch kernel=gqa_sum_kernel grid=(368,1,1) block=(256,1,1) lds=0",
                    '.amdgcn_target "amdgcn-amd-amdhsa--gfx950"', ".text"]
        for name, body in (("gqa_main_kernel", self.k1()), ("gqa_sum_kernel", self.k2())):
            L += [f".globl {name}", ".p2align 8", f".type {name},@function", f"{name}:"] + body
        L += [".p2align 8", ".fill 3072, 4, 0xbf800000"]
        L += ['.section .rodata,"a"']
        for name, vg, acc, sg in (("gqa_main_kernel", 512, 256, 102), ("gqa_sum_kernel", 80, 80, 48)):
            L += [".p2align 6", f".amdhsa_kernel {name}", f"  .amdhsa_next_free_vgpr {vg}", f"  .amdhsa_next_free_sgpr {sg}", f"  .amdhsa_accum_offset {acc}",
                  "  .amdhsa_group_segment_fixed_size 0", "  .amdhsa_kernarg_size 64", "  .amdhsa_user_sgpr_count 2",
                  "  .amdhsa_user_sgpr_kernarg_segment_ptr 1", "  .amdhsa_system_sgpr_workgroup_id_x 1", ".end_amdhsa_kernel"]
        if self.o.get("prof"): L.append("; marks " + " ".join(map(str, self.marks)))
        return "\n".join(L) + "\n"

if __name__ == "__main__":
    g = Gen()
    t = g.text()
    out = sys.argv[1] if len(sys.argv) > 1 else "k.s"
    open(out, "w").write(t)
    print(g.stats)
```

```python
def add_kernel(t, name, body, grid, block, lds, vg, front=False, times=1):
    line = f"; @launch kernel={name} grid=({grid},1,1) block=({block},1,1) lds={lds}\n" * times
    if front: t = t.replace("; @launch kernel=gqa_main_kernel", line + "; @launch kernel=gqa_main_kernel", 1)
    else: t = t.replace('.amdgcn_target', line + '.amdgcn_target', 1)
    code = f".globl {name}\n.p2align 8\n.type {name},@function\n{name}:\n{body}\n"
    t = t.replace('.section .rodata,"a"', code + '.section .rodata,"a"', 1)
    t += f""".p2align 6
.amdhsa_kernel {name}
  .amdhsa_next_free_vgpr {vg}
  .amdhsa_next_free_sgpr 96
  .amdhsa_accum_offset {vg}
  .amdhsa_group_segment_fixed_size 0
  .amdhsa_kernarg_size 64
  .amdhsa_user_sgpr_count 2
  .amdhsa_user_sgpr_kernarg_segment_ptr 1
  .amdhsa_system_sgpr_workgroup_id_x 1
.end_amdhsa_kernel
"""
    return t
```

```python
import re

def R(cls, lo, n=1):
    return [(cls, lo + i) for i in range(n)]

def rtxt(cls, lo, n=1):
    return f"{cls}{lo}" if n == 1 else f"{cls}[{lo}:{lo+n-1}]"

class Op:
    __slots__ = ("kind", "text", "rd", "wr", "tag", "deps", "users", "pos", "hi", "lo", "idx", "bb", "want", "vmtag", "srcc", "note", "pin", "off", "alap")
    def __init__(self, kind, text, rd=(), wr=(), vmtag=None, want=None, srcc=(), note=None):
        self.kind = kind
        self.text = text
        self.rd = list(rd); self.wr = list(wr)
        self.vmtag = vmtag
        self.want = want
        self.srcc = list(srcc)
        self.deps = []; self.users = []
        self.pos = None; self.hi = None; self.lo = 0; self.bb = False; self.note = note
        self.pin = None; self.off = 0; self.tag = []; self.alap = None

LAT = dict(DM=8, MV=4, VM=2, TV=1, DV=6, SG=1, VW=1, DB=5, WB=4)
UNITS = dict(T=2, G=2, W=2, D=1, V=1, S=0)

def gap_lat(a, b, raw):
    ka, kb = a.kind, b.kind
    if ka == "D" and kb == "B": return LAT["DB"]
    if not raw: return 0
    if ka == "W" and kb == "B": return LAT["WB"]
    if ka == "S" and kb == "V": return 1
    if ka == "D": return LAT["DM"] if kb == "M" else LAT["DV"]
    if ka == "M" and kb != "M": return LAT["MV"]
    if ka in "VT" and kb == "M": return LAT["VM"]
    if ka == "T" and kb in "VT": return LAT["TV"]
    if ka == "V" and kb == "T": return 1
    if ka == "V" and kb in "SB": return 1
    if ka == "S" and kb == "G": return LAT["SG"]
    if ka in "VT" and kb in "WG": return LAT["VW"]
    return 0

def build_deps(ops):
    lastw = {}; readers = {}
    for i, o in enumerate(ops):
        o.idx = i; d = {}
        for r in o.rd:
            if r in lastw: d[lastw[r]] = True
        for r in o.wr:
            if r in lastw: d.setdefault(lastw[r], lastw[r].kind in "MD")
            for q in readers.get(r, []):
                if q is not o: d.setdefault(q, False)
        o.deps = list(d.items())
        for p, raw in o.deps: p.users.append((o, raw))
        for r in o.rd: readers.setdefault(r, []).append(o)
        for r in o.wr:
            lastw[r] = o; readers[r] = []

def first_gap(p, o, raw, ppos):
    l = gap_lat(p, o, raw)
    return ppos + (max(l - 1, 0) if p.bb else l)

def schedule(ops):
    build_deps(ops)
    back = [o for o in ops if o.kind in "MB"]
    for i, o in enumerate(back):
        o.bb = True; o.pos = i
    nb = len(back)
    fill = [o for o in ops if not o.bb]
    def cap(g):
        if g < 0: return 0
        if back[g].kind == "B": return 0
        if g + 1 < nb and back[g + 1].kind == "B": return 0
        return 2
    hard = {}
    for o in reversed(fill):
        hh = nb - 1
        for u, raw in o.users: hh = min(hh, u.pos - 1 if u.bb else hard[u])
        hard[o] = hh
    for o in fill:
        lo = -1
        for p, raw in o.deps: lo = max(lo, first_gap(p, o, raw, p.pos if p.bb else p.lo))
        if o.pin is not None: lo = max(lo, o.pin.pos + o.off)
        o.lo = min(lo, hard[o])
    used = [0] * (nb + 1)
    def latest(o):
        hi = nb - 1
        for u, raw in o.users:
            l = gap_lat(o, u, raw)
            hi = min(hi, u.pos - 1 - max(l - 1, 0) if u.bb else u.alap - l)
        if o.want is not None: hi = min(hi, o.lo + o.want)
        return max(hi, o.lo)
    import heapq
    nusers = {o: sum(1 for u, _ in o.users if not u.bb) for o in fill}
    heap = [(-latest(o), -o.lo, -o.idx, o) for o in fill if nusers[o] == 0]
    heapq.heapify(heap)
    while heap:
        h, _, _, o = heapq.heappop(heap)
        g = -h; un = UNITS[o.kind]
        k = g
        while k > o.lo and used[k] + un > cap(k) and un: k -= 1
        if un and used[k] + un > cap(k):
            k = min(range(o.lo, g + 1), key=lambda x: (used[x] - cap(x), -x))
        o.alap = k; used[k] += un
        for p, _ in o.deps:
            if not p.bb:
                nusers[p] -= 1
                if nusers[p] == 0: heapq.heappush(heap, (-latest(p), -p.lo, -p.idx, p))
    for o in fill: o.hi = o.alap
    out = []; pend = list(fill); prev_cls = "D"
    def ready(o, g, strict=True):
        if strict and o.lo > g: return False
        for p, raw in o.deps:
            if p.pos is None or (p.bb and p.pos > g): return False
            if strict and g < first_gap(p, o, raw, p.pos): return False
        return True
    key = lambda o: (o.hi, o.idx)
    for g in range(-1, nb):
        if g >= 0: out.append(back[g])
        cur = []
        def take(o):
            o.pos = g; pend.remove(o); cur.append(o)
        win = [o for o in pend if o.lo <= g]
        c = cap(g)
        free_s = 0
        if c:
            cand = sorted([o for o in win if ready(o, g)], key=key)
            main = [o for o in cand if o.kind != "S"]
            sal = [o for o in cand if o.kind == "S"]
            free_s = 3
            if main:
                f = main[0]
                if f.hi > g:
                    want = "TV" if (prev_cls == "D" or (sal and sal[0].hi <= g)) else "DGW"
                    alt = [o for o in main if o.kind in want]
                    if want == "TV":
                        tt = [o for o in alt if o.kind == "T"]
                        if tt and alt[0].hi > g + 1: alt = tt
                    if alt: f = alt[0]
                take(f)
                if f.kind in "TGW":
                    free_s = 1 if f.kind == "T" else 0
                else:
                    urgent_s = bool(sal) and sal[0].hi <= g
                    kinds = ("V" if f.kind == "V" else "") if urgent_s else "DV"
                    sec = [o for o in win if o.pos is None and o.kind in kinds and ready(o, g)]
                    if f.kind == "V": sec = [o for o in sec if o.kind == "V" or all(p is not f for p, _ in o.deps)]
                    sec.sort(key=key)
                    if sec: take(sec[0])
                    ks = "".join(sorted(o.kind for o in cur))
                    free_s = {"D": 1, "V": 2, "DD": 0, "DV": 0, "VV": 1}[ks]
            prev_cls = "D" if any(o.kind in "DGW" for o in cur) else "T"
        elif g >= 0 and back[g].kind == "B":
            cand = sorted([o for o in win if o.kind in "SV" and ready(o, g)], key=lambda o: (o.kind != "S", o.hi, o.idx))
            if cand: take(cand[0])
            prev_cls = "T"
        n = 0
        while n < free_s:
            sal = sorted([o for o in win if o.pos is None and o.kind == "S" and ready(o, g) and all(p not in cur or p.kind == "S" for p, _ in o.deps)], key=key)
            if not sal: break
            take(sal[0]); n += 1
        extra = []
        if c or g < 0:
            while True:
                late = sorted([o for o in win if o.pos is None and o.hi <= g and o.kind != "G" and ready(o, g)], key=key)
                if not late: break
                take(late[0])
        order = {"D": 0, "G": 0, "W": 0, "S": 1, "V": 2, "T": 2}
        inner = any(p in cur and order[p.kind] > order[o.kind] for o in cur for p, _ in o.deps)
        cur.sort(key=(lambda o: o.idx) if inner else (lambda o: (order[o.kind], o.idx)))
        while True:
            must = [o for o in pend if hard[o] <= g and ready(o, g, False)]
            if not must: break
            must.sort(key=lambda o: o.idx)
            take(must[0])
        out += cur
    assert not pend, [o.text for o in pend[:5]]
    check_order(out)
    return out

def check_order(seq):
    where = {id(o): i for i, o in enumerate(seq)}
    for o in seq:
        for p, _ in o.deps:
            assert where[id(p)] < where[id(o)], (p.text, o.text)

def insert_waits(seq, age=4):
    out = []
    ds = []; done = 0; pendreg = {}
    vm = []; vmdone = 0; pendvm = {}
    mcount = 0
    def free_slot(need):
        j = len(out); nds = len(ds); m = mcount
        while j > 0:
            p = out[j - 1]
            if p.kind in "BL" or p.text.startswith("s_waitcnt"): return None
            if p.kind == "M":
                if m - ds[need][1] < age or nds <= need: return None
                if j == len(out) or out[j].kind in "VTM": return j, nds, m
                m -= 1
            if p.kind in "DW": nds -= 1
            j -= 1
        return None
    for o in seq:
        need = -1
        for r in o.rd + o.wr:
            if r in pendreg and pendreg[r] >= done: need = max(need, pendreg[r])
        if o.kind == "B" and o.note == "all": need = len(ds) - 1
        needvm = -1
        for r in o.rd + o.wr:
            if r in pendvm and pendvm[r] >= vmdone: needvm = max(needvm, pendvm[r])
        if o.kind == "B" and o.vmtag:
            for i, v in enumerate(vm):
                if v.kind == "G" and v.vmtag in o.vmtag: needvm = max(needvm, i)
            for t in o.vmtag: assert any(v.vmtag == t for v in vm), t
        parts = []
        if needvm >= vmdone:
            n = len(vm) - 1 - needvm
            assert n <= 63
            parts.append(f"vmcnt({n})"); vmdone = needvm + 1
        j, nds, m = len(out), len(ds), mcount
        if need >= done or (o.kind == "B" and parts and done < len(ds) and ds[done][1] <= mcount - age):
            if not parts and o.kind != "B":
                fs = free_slot(need)
                if fs: j, nds, m = fs
            k = max(need, done - 1)
            while k + 1 < nds and ds[k + 1][1] <= m - age: k += 1
            n = min(nds - 1 - k, 15)
            parts.append(f"lgkmcnt({n})"); done = nds - n
        if parts: out.insert(j, Op("S", "s_waitcnt " + " ".join(parts)))
        out.append(o)
        if o.kind == "M": mcount += 1
        if o.kind in "DW":
            ds.append((o, mcount))
            for r in o.wr: pendreg[r] = len(ds) - 1
            if o.kind == "D":
                for r in o.rd:
                    if r[0] == "t": pendreg[("rel",) + r[1:]] = len(ds) - 1
        if o.kind == "G" or (o.kind == "B" and o.note == "vm"):
            vm.append(o)
            for r in o.wr:
                if r[0] in "va": pendvm[r] = len(vm) - 1
    return out

def states(o):
    m = re.match(r"s_nop (\d+)", o.text)
    if m: return int(m.group(1)) + 1
    if o.kind == "L": return 0
    return 1

def fix_hazards(seq):
    out = []; nops = 0
    def isreg(r): return r[0] in ("v", "a", "s", "m0", "vcc")
    def dist_from_mfma(i, o):
        t = 0; lastm = 0
        for p in out[i + 1:] + [o]:
            if p.kind == "L": continue
            t += 1
            if p.kind == "M": t = max(t, lastm + 4); lastm = t
            if p is not o: t += states(p) - 1
        return t - 1
    for o in seq:
        need = 0; dist = 0
        rd = set(r for r in o.rd if isreg(r)); wr = set(r for r in o.wr if isreg(r))
        for i in range(len(out) - 1, -1, -1):
            p = out[i]
            if dist >= 10: break
            pw = set(p.wr); req = 0; dd = dist
            if p.kind == "M":
                if o.kind == "M":
                    ab = rd - set(o.srcc)
                    if pw & ab: req = 8
                    elif pw & set(o.srcc) and set(o.srcc) != pw: req = 6
                elif pw & (rd | wr): req = 8
                if o.kind in "VT" and set(p.srcc) & wr: req = max(req, 3)
                if req and o.kind != "M": dd = dist_from_mfma(i, o)
            elif p.kind in "VT":
                if o.kind == "M" and pw & rd: req = 2
                if "permlane" in o.text and pw & rd: req = 2
                if p.kind == "T" and "permlane" not in p.text and o.kind in "VT" and pw & rd: req = max(req, 1)
                if "readfirstlane" in o.text and pw & rd: req = max(req, 1)
                sw = set(r for r in pw if r[0] in ("s", "vcc"))
                if sw & rd:
                    if o.kind in "VT": req = max(req, 2)
                    if o.kind == "G": req = max(req, 5)
                    if o.kind in "SB": req = max(req, 2)
            elif p.kind == "S":
                if ("m0", 0) in pw and o.kind == "G": req = 1
            elif p.kind == "G":
                if "store" in p.text and o.kind in "VTMD" and set(p.rd) & wr: req = 2
            need = max(need, req - dd)
            dist += states(p)
        if need > 0:
            out.append(Op("S", f"s_nop {need-1}")); nops += need
        out.append(o)
    return out, nops

def estimate(seq):
    t = 0; mf_free = 0; prev = None; valu_ok = 0
    for o in seq:
        k = o.kind
        if k == "L": continue
        if prev in ("D", "W") and k not in "DW": t += 4
        if prev in ("V", "T") and k in "DWG": t += 4
        if k == "M": t = max(t, mf_free); mf_free = t + 16; valu_ok = t + 8; t += 4
        elif k in "VT": t = max(t, valu_ok); t += 4 if k == "V" else 8
        elif k == "G": t += 12
        elif k == "W": t += 20
        else: t += 4 * states(o)
        prev = k
    return max(t, mf_free)
```

```python
import k1, sys
from probe_util import add_kernel
STAMP_OFF = k1.STAMP_OFF
def diag_body(metric, n2=368):
    L = []; A = L.append
    A("s_cmp_ge_u32 s2, 1"); A("s_cbranch_scc1 L_endd")
    A("s_memrealtime s[10:11]"); A("s_load_dwordx2 s[4:5], s[0:1], 56"); A("s_waitcnt lgkmcnt(0)")
    A(f"s_add_u32 s4, s4, {STAMP_OFF}"); A("s_addc_u32 s5, s5, 0")
    A("s_load_dword s60, s[4:5], 0"); A("s_waitcnt lgkmcnt(0)"); A("s_sub_u32 s60, s60, 100000")
    A("s_mov_b32 s40, -1"); A("s_mov_b32 s41, 0"); A("s_mov_b32 s42, 0"); A("s_mov_b32 s43, -1"); A("s_mov_b32 s44, 0")
    for j in range(1, 6): A(f"s_mov_b32 s{50+j}, 0")
    A("s_mov_b32 s6, 0")
    A("L_dl:"); A("s_load_dwordx16 s[16:31], s[4:5], 0"); A("s_waitcnt lgkmcnt(0)")
    for j in range(8): A(f"s_sub_u32 s{16+2*j}, s{16+2*j}, s60")
    A("s_min_u32 s43, s43, s28"); A("s_max_u32 s44, s44, s30")
    A("s_cmp_ge_u32 s6, 256"); A("s_cbranch_scc1 L_dn")
    A("s_min_u32 s40, s40, s16"); A("s_max_u32 s41, s41, s16"); A("s_max_u32 s42, s42, s26")
    for j in range(1, 6): A(f"s_sub_u32 s7, s{16+2*j}, s16"); A(f"s_add_u32 s{50+j}, s{50+j}, s7")
    A("L_dn:"); A("s_add_u32 s4, s4, 64"); A("s_addc_u32 s5, s5, 0"); A("s_add_u32 s6, s6, 1"); A(f"s_cmp_lt_u32 s6, {n2}"); A("s_cbranch_scc1 L_dl")
    if metric == "base": A("s_mov_b32 s8, 0")
    elif metric == "span": A("s_sub_u32 s8, s44, s40")
    elif metric == "k1span": A("s_sub_u32 s8, s42, s40")
    elif metric == "skew": A("s_sub_u32 s8, s41, s40")
    elif metric == "gap": A("s_sub_u32 s8, s43, s42")
    else: A(f"s_lshr_b32 s8, s{50+int(metric)}, 8")
    A("s_min_u32 s8, s8, 20000"); A("s_mul_i32 s8, s8, 10"); A("s_add_u32 s8, s8, 20000")
    A("L_sp:"); A("s_memrealtime s[12:13]"); A("s_waitcnt lgkmcnt(0)"); A("s_sub_u32 s9, s12, s10"); A("s_cmp_lt_u32 s9, s8"); A("s_cbranch_scc1 L_sp")
    A("L_endd:"); A("s_endpgm")
    return "\n".join(L)
def make(metrics, **kw):
    base = k1.Gen(stamps=True, **kw).text()
    for m in metrics:
        open(f"d_{m}.s", "w").write(add_kernel(base, "diag_kernel", diag_body(m), 1, 64, 0, 8))
if __name__ == "__main__":
    make(["base", "span", "k1span", "skew", "gap", "1", "2", "3", "4", "5"], start=[['wq0','x0'],[],['wq1','x1','wq2']])
```

```python
import sys, math, struct
from sched import *

NAME = "standalone__gqa_block_cached__near_ridge"
STAMP_OFF = 200 * 1024 * 1024
DUMP_OFF = 64 * 1024 * 1024

def f32(x): return struct.unpack("<I", struct.pack("<f", x))[0]
QSCALE = math.log2(math.e) / math.sqrt(128.0)

KS, VS = 16640, 16896
LDS = 163840
K_SLOT = {1: 0, 0: KS, 2: 2 * KS}
V_WIN = LDS - 3 * VS
V_SLOT = {2: V_WIN, 0: V_WIN + VS, 1: V_WIN + 2 * VS}
A_LO = 2 * KS
X_SLOT = [A_LO + 10240 * i for i in range(4)]
WQ_WIN = A_LO + 40960
WQ_SLOT = [WQ_WIN + VS * i for i in range(3)]
assert WQ_SLOT[2] + VS <= V_SLOT[0]
QX = X_SLOT[2]
O_BASE = KS
WO_A = O_BASE + 40960
WO_B = WO_A + 32768
FLAG = WO_B + 32768
OX = FLAG + 64
assert OX + 4 * 5120 <= V_SLOT[1]
WO_C = LDS - 32768
assert WO_A >= 3 * KS and WO_A + 32768 <= V_WIN

vTID = 0
aK = {(0, 0): 1, (0, 1): 2, (1, 0): 3, (1, 1): 4}
aV = {(0, 0): 5, (0, 1): 6, (1, 0): 7, (1, 1): 8}
vK, vV, vWo = 9, 10, 11
aWo = [12, 13]; aFr = 14
aOw = [15, 16]; aOws = 17; aOr = 18; aOXw = 19; aOXr = 20; vSt = 21; vSt2 = 106; aFl = 23; vPR = [22, 27]
vT = [24, 25, 26, 27]
Qf = lambda qt, s: 28 + (qt * 4 + s) * 4
NM = lambda qt: 76 + 4 * qt
Sr = lambda par, qt, u: (88 if par == 0 else 112) + (qt * 2 + u) * 4
Pr = lambda par, qt: (128 if par == 0 else 140) + 4 * qt
Or = lambda qt, dt: 148 + (qt * 8 + dt) * 4
Lr = lambda qt: 244 + 4 * qt
vWq = [112, 113, 114, 115]; vX = [116, 117, 118, 119, 120]; aWq = [121, 122]; aX = {(0, 0): 123, (0, 1): 124, (1, 0): 125, (1, 1): 126}
aQXw, aQXr = 140, 141
AA = lambda buf, t: buf * 32 + 4 * t
AB = lambda buf, qt: 64 + buf * 12 + 4 * qt
KF = lambda buf, u, s: 96 + buf * 32 + (u * 4 + s) * 4
VF = lambda buf, dt: 160 + buf * 32 + dt * 4
ONES = 224
QORD = [2, 0, 3, 1, 4]
OB = lambda qt, s: 96 + (QORD.index(qt) * 8 + s) * 4
WF = lambda buf, s: buf * 32 + 4 * s
CA = lambda e: 148 + 4 * (e % 8)
PK = lambda n: 212 + 4 * (n % 8)

sW, sB, sG = 3, 44, 45
SRD_X, SRD_K, SRD_V, SRD_WQ, SRD_WO, SRD_WS, SRD_OUT, SRD_DBG = 20, 24, 28, 32, 36, 40, 12, 16
MB_OFF = 32 * 1024 * 1024
OOB = 0x40000000
sB9 = 1
sWQ = lambda i: 48 + i
sXo = lambda i: 66 + i
sWO = lambda i: 71 + i
sKV = lambda j: 80 + j
sMK, sMV, sMX, sMX1, sMWO = 88, 89, 90, 91, 92
sST, sPASS, sSC = 93, 94, 95
sT = [4, 5, 6, 7, 8, 9, 10, 11]
sSTAMP = 96

def default_plan():
    p = {}
    for i in range(1, 16): p[f"A{i}"] = [(f"wq{i+2}", 1, 4)]
    for i, n in ((4, "x2"), (8, "x3")):
        for k, ms in enumerate(("01", "23", "4")):
            p[f"A{i+k}"] = [(f"wq{i+k+2}", 1, 3), (f"{n}.{ms}", 13, 3)]
    for k in range(3): p[f"A{12+k}"].append((f"x4.{k}", 17, 3))
    p["A16"] = [("k0", 1, 3), ("v0", 13, 3)]
    p["A17"] = [("k1", 6, 4)]
    for j in range(7): p[f"BK{j}"] = [(f"v{j+1}", 2, 4)]
    for j in range(6): p[f"BV{j}"] = [(f"k{j+2}", 2, 4)]
    p["BV6"] = [("wo0a", 2, 4)]; p["BK7"] = [("wo0b", 2, 4)]; p["BV7"] = [("wo1", 2, 4)]
    p["C0"] = [("wo2", 1, 3), ("wo3", 27, 4)]
    p["C1"] = [("wo4", 18, 4)]
    for jb in range(2, 6): p[f"E{jb}"] = [(f"wo{jb+3}", 2, 4)]
    return p

class Gen:
    def __init__(self, **kw):
        self.o = dict(kv_flags=" nt", w_flags="", st_flags=" sc1", ld_flags="", plan=default_plan(), start=[["wq0", "x0"], [], ["wq1", "wq2", "x1"]],
                      stamps=False, force_fb=False, code_pf=True, lo_thr=2.0 ** -40, hi_thr=2.0 ** 40, bk0_at=(0, 6), bv_at=9, c1_at=4, st_want=8,
                      fuse=True, out_flags="", ev={21: ['flag0'], 28: ['poll0'], 32: ['check0'], 37: ['flag1'], 43: ['poll1']}, spin_max=400000)
        self.o.update(kw)
        self.objs = {}
        self.ops = []

    def add(self, op): self.ops.append(op); return op
    def S(self, text, rd=(), wr=(), **k): return self.add(Op("S", text, rd, wr, **k))
    def V(self, text, rd=(), wr=(), **k): return self.add(Op("V", text, rd, wr, **k))
    def T(self, text, rd=(), wr=(), **k): return self.add(Op("T", text, rd, wr, **k))
    def mfma(self, d, a, b, c, ca="a", cb="v"):
        ctxt = "0" if c is None else rtxt("v", c, 4)
        cc = [] if c is None else R("v", c, 4)
        return self.add(Op("M", f"v_mfma_f32_16x16x32_bf16 {rtxt('v', d, 4)}, {rtxt(ca, a, 4)}, {rtxt(cb, b, 4)}, {ctxt}",
                           R(ca, a, 4) + R(cb, b, 4) + cc, R("v", d, 4), srcc=cc))
    def dsr(self, cls, d, n, addr, off, obj, tr=False):
        ins = "ds_read_b64_tr_b16" if tr else {4: "ds_read_b128", 1: "ds_read_b32"}[n]
        assert 0 <= off < 65536, off
        return self.add(Op("D", f"{ins} {rtxt(cls, d, n)}, v{addr} offset:{off}", R("v", addr) + [("t", obj)], R(cls, d, n)))
    def dsw(self, src, n, addr, off, obj):
        ins = {4: "ds_write_b128", 1: "ds_write_b32"}[n]
        assert 0 <= off < 65536
        k = len(self.objs[obj]["w"]); tok = ("w", obj, k); self.objs[obj]["w"].append(tok)
        return self.add(Op("W", f"{ins} v{addr}, {rtxt('v', src, n)} offset:{off}", R("v", addr) + R("v", src, n) + [("t", "free_" + obj)], [tok], note=obj))
    def obj(self, name, lo, size):
        assert lo + size <= LDS
        self.objs[name] = dict(lo=lo, hi=lo + size, w=[])
    def m0(self, obj, mbase, mconst):
        return self.S(f"s_add_u32 m0, s{mbase}, {mconst}", R("s", mbase) + [("t", "free_" + obj)], [("m0", 0)])
    def dma(self, obj, vaddr, srd, soff, ioff, flags, at):
        k = len(self.objs[obj]["w"]); tok = ("g", obj, k); self.objs[obj]["w"].append(tok)
        io = f" offset:{ioff}" if ioff else ""
        g = self.add(Op("G", f"buffer_load_dwordx4 v{vaddr}, s[{srd}:{srd+3}], s{soff} offen{io}{flags} lds",
                        R("v", vaddr) + R("s", soff) + [("m0", 0), ("t", "free_" + obj), ("vmorder", 0)], [tok, ("vmorder", 0)], vmtag=obj, note=obj))
        if at is not None:
            g.pin = at[0]; g.off = at[1]; g.want = 1; at[1] += at[2]
        return g
    def barrier(self, name, publish=(), release=(), free=()):
        rd = []; wr = []; vm = []
        for n in publish:
            rd += self.objs[n]["w"]; wr.append(("t", n))
            if self.objs[n]["w"][0][0] == "g": vm.append(n)
        for n in release:
            rd.append(("rel", n)); wr.append(("t", n))
        todo = self.plan.get(name, [])
        for n in list(free) + [t[0].split(".")[0].rstrip("ab") for t in todo]: wr.append(("t", "free_" + n))
        b = self.add(Op("B", "s_barrier", rd, wr, vmtag=vm))
        b.tag = list(release)
        for (n, off, sp) in todo: self.load(n, [b, off, sp])
        return b

    WO_SLOTS = [WO_A, WO_B, WO_A, WO_C, WO_B, WO_A, WO_C, WO_B, WO_A]
    def load(self, n, at=None):
        wf, kf = self.o["w_flags"], self.o["kv_flags"]
        if n.startswith("wq"):
            i = int(n[2:]); self.obj(n, WQ_SLOT[i % 3], VS)
            self.m0(n, sMV, WQ_SLOT[i % 3])
            for a in range(4): self.dma(n, vWq[a], SRD_WQ, sWQ(i), 1056 * a, wf, at)
        elif n[0] == "x":
            o = n[:2]; jj = int(n[1]); slot = X_SLOT[(2 * jj) % 4]
            if o not in self.objs: self.obj(o, slot, 10240 if jj == 4 else 20480)
            ms = [int(c) for c in (n[3:] or ("012" if jj == 4 else "01234"))]
            for m in ms:
                if m == ms[0] or m == 4: self.m0(o, sMX1 if jj == 4 else sMX, slot + 1024 * (m & 4))
                self.dma(o, vX[m], SRD_X, sXo(jj), 1024 * (m & 3), wf, at)
        elif n[0] == "k":
            j = int(n[1]); self.obj(n, K_SLOT[j % 3], KS)
            for a in range(4):
                self.m0(n, sMK, K_SLOT[j % 3] + 1824 * a); self.dma(n, vK, SRD_K, sKV(j), 256 * a, kf, at)
        elif n[0] == "v":
            j = int(n[1]); self.obj(n, V_SLOT[j % 3], VS)
            for a in range(4):
                self.m0(n, sMV, V_SLOT[j % 3] + 800 * a); self.dma(n, vV, SRD_V, sKV(j), 256 * a, kf, at)
        else:
            jb = int(n[2]); o = n[:3]; slot = self.WO_SLOTS[jb]
            if o not in self.objs: self.obj(o, slot, 32768)
            for half in {"a": (0,), "b": (1,), "": (0, 1)}[n[3:]]:
                self.m0(o, sMWO, slot + 4096 * half)
                for a in range(4):
                    c = 9216 * (4 * half + a) - 1024 * a; t = sT[a % 2]
                    if c: self.S(f"s_add_u32 s{t}, s{sWO(jb)}, {c}", R("s", sWO(jb)) + [("t", "free_" + o)], R("s", t))
                    self.dma(o, vWo, SRD_WO, t if c else sWO(jb), 1024 * a, wf, at)

    def stamp(self, k):
        if not self.o["stamps"]: return
        r = [96, 98, 100, 66, 68][k]
        self.add(Op("B", f"s_waitcnt lgkmcnt(0)\n    s_memrealtime s[{r}:{r+1}]\n    s_waitcnt lgkmcnt(0)", [], [], note="all")).tag = []

    def rd_stage(self, i):
        buf = i & 1; slot = WQ_SLOT[i % 3] - WQ_WIN
        j = i >> 1; xo = f"x{j >> 1}"; xs = X_SLOT[j % 4] - A_LO
        def rb(qt):
            own = 0 if qt < 2 else 1
            off = xs + (qt * 2048 if qt < 2 else 2 * 2048)
            self.dsr("a", AB(buf, qt), 4, aX[(own, i & 1)], off, xo)
        for t in range(8):
            if t < 3: rb(t)
            for v in range(2):
                self.dsr("a", AA(buf, t) + 2 * v, 2, aWq[t >> 2], slot + v * 8448 + (t & 3) * 32, f"wq{i}", tr=True)
    def q_tiles(self):
        return [(2, t) for t in range(4)] + [(qt, t) for qt in range(2) for t in range(8)]
    def mm_stage(self, i):
        buf = i & 1
        for t in range(8):
            for qt in range(3):
                if qt == 2 and t >= 4: continue
                self.mfma(Or(qt, t), AA(buf, t), AB(buf, qt), None if i == 0 else Or(qt, t), cb="a")
    def q_convert(self, qt, s):
        f = Qf(qt, s)
        for u in range(2):
            c = Or(qt, 2 * s + u)
            for i in range(4):
                self.V(f"v_mul_f32 v{c+i}, s{sSC}, v{c+i}", R("v", c + i) + R("s", sSC), R("v", c + i))
            for h in range(2):
                self.V(f"v_cvt_pk_bf16_f32 v{f+2*u+h}, v{c+2*h}, v{c+2*h+1}", R("v", c + 2 * h, 2), R("v", f + 2 * u + h))
        for h in range(2):
            self.T(f"v_permlane16_swap_b32 v{f+h}, v{f+2+h}", [("v", f + h), ("v", f + 2 + h)], [("v", f + h), ("v", f + 2 + h)])

    def phase_a(self):
        for i in range(18):
            pub = [f"wq{i}"]; rel = []; fr = []
            if i % 4 == 0: pub.append(f"x{i >> 2}")
            if i >= 1: rel.append(f"wq{i-1}")
            if i in (4, 8, 12, 16): rel.append(f"x{(i >> 2) - 1}")
            if i == 16: fr.append("qx")
            b = self.barrier(f"A{i}", pub, rel, fr)
            if self.o["fuse"] and i == 2: b.vmtag.append("mbz")
            if self.o["fuse"] and i == 16: self.ready_store(b)
            if i == 0: self.stamp(1)
            self.rd_stage(i)
            if 1 <= i <= 16: self.mm_stage(i - 1)
        self.obj("qx", QX, 8192)
        for t in range(8): self.mfma(Or(1, t), AA(0, t), AB(0, 1), Or(1, t), cb="a")
        for (qt, t) in self.q_tiles():
            for i in ((17,) if qt == 1 else (16, 17)):
                self.mfma(Or(qt, t), AA(i & 1, t), AB(i & 1, qt), Or(qt, t), cb="a")
            if t & 1:
                self.q_convert(qt, t >> 1)
                if qt == 2: self.dsw(Qf(2, t >> 1), 4, aQXw, (t >> 1) * 1024, "qx")
            if (qt, t) == self.o["bk0_at"]:
                self.barrier("BK0", ["qx", "k0"], ["wq17", "x4"])
                self.rd_k(0)
                for s in range(2): self.dsr("v", Qf(2, 2 + s), 4, aQXr, s * 1024, "qx")

    def ready_store(self, b):
        b.wr.append(("t", "rdy"))
        self.V(f"v_lshlrev_b32 v253, 12, v0", R("v", 0) + [("t", "rdy")], R("v", 253))
        self.S(f"s_lshl_b32 s9, 1, s{sG}", [("t", "rdy")], R("s", 9))
        self.V(f"v_mov_b32 v254, s9", R("s", 9), R("v", 254))
        self.S(f"s_lshl_b32 s9, s{sB}, 4", [], R("s", 9))
        self.add(Op("G", f"buffer_atomic_or v254, v253, s[{SRD_DBG}:{SRD_DBG+3}], s9 offen sc1", R("v", 253, 2) + R("s", 9) + [("vmorder", 0)], [("vmorder", 0)], vmtag="rdy", want=4))
    def spin(self, name, load, cmp):
        self.spins.append((name, load, cmp))
        return f"{cmp}\n    s_nop 1\n    s_cbranch_vccnz L_spin_{name}\nL_back_{name}:"
    def ready_poll(self, b):
        b.wr.append(("t", "rp"))
        self.V(f"v_lshrrev_b32 v24, 6, v0", R("v", 0) + [("t", "rp")], R("v", 24))
        self.V(f"v_lshlrev_b32 v24, 12, v24", R("v", 24), R("v", 24))
        self.S(f"s_cmp_eq_u32 s{sW}, 0\n    s_cselect_b32 s0, 0xffff, 0", [("t", "rp")], R("s", 0))
        self.rp_load = f"buffer_load_dword v25, v24, s[{SRD_DBG}:{SRD_DBG+3}], s9 offen sc1"
        self.add(Op("G", self.rp_load, R("v", 24) + R("s", 9) + [("vmorder", 0)], R("v", 25) + [("vmorder", 0)], vmtag="rp", want=8))
    def ready_check(self):
        self.add(Op("B", self.spin("rdy", self.rp_load, "v_cmp_ne_u32 vcc, s0, v25"), [("v", 25), ("v", 24), ("s", 0), ("s", 9)], [("vcc", 0)]))

    SEL = [28, 32]; vMBw, vMBr, vPL, vOA, vPOLL, vONE, vOB = 36, 37, 38, 39, 40, 41, 42
    DT = [44, 48, 52]; LAND = [88, 180, 56]
    def fuse_setup(self, tok):
        V = lambda t, d, rd=(): self.V(t, [("v", x) for x in rd] + [tok], R("v", d))
        S = lambda t, d, rd=(): self.S(t, [("s", x) for x in rd] + [tok], R("s", d))
        T0, T1 = 120, 121
        V(f"v_bfe_u32 v{T0}, v0, 1, 3", T0); V(f"v_and_b32 v{T1}, 1, v0", T1); V(f"v_lshlrev_b32 v{T1}, 4, v{T1}", T1, [T1])
        V(f"v_mov_b32 v{self.vONE}, 0x3f80", self.vONE); V(f"v_lshlrev_b32 v{T1}, v{T1}, v{self.vONE}", T1, [T1, self.vONE])
        for m in range(8):
            self.V(f"v_cmp_eq_u32 vcc, {m}, v{T0}", R("v", T0), [("vcc", 0)])
            self.V(f"v_cndmask_b32 v{28+m}, 0, v{T1}, vcc", R("v", T1) + [("vcc", 0)], R("v", 28 + m))
        V(f"v_mov_b32 v{self.vONE}, 1", self.vONE)
        V(f"v_and_b32 v{T0}, 63, v0", T0); V(f"v_lshrrev_b32 v{T1}, 4, v{T0}", T1, [T0]); V(f"v_lshlrev_b32 v{T1}, 28, v{T1}", T1, [T1])
        V(f"v_lshl_add_u32 v{self.vMBw}, v{T0}, 10, v{T1}", self.vMBw, [T0, T1])
        V(f"v_and_b32 v{self.vMBr}, 15, v0", self.vMBr); V(f"v_lshlrev_b32 v{self.vMBr}, 2, v{self.vMBr}", self.vMBr, [self.vMBr])
        S(f"s_lshl_b32 s48, s{sW}, 8", 48); S(f"s_add_u32 s48, s48, {MB_OFF}", 48, [48])
        S(f"s_lshl_b32 s49, s{sB}, 14", 49); S(f"s_add_u32 s48, s48, s49", 48, [48, 49])
        S(f"s_lshl2_add_u32 s49, s{sG}, s48", 49, [48])
        S(f"s_lshl_b32 s50, s{sG}, 10", 50); S(f"s_add_u32 s48, s48, s50", 48, [48, 50])
        V(f"v_bfe_u32 v{T0}, v0, 4, 2", T0); V(f"v_lshlrev_b32 v{T0}, 12, v{T0}", T0, [T0])
        V(f"v_bfe_u32 v{T1}, v0, 3, 1", T1); V(f"v_lshl_add_u32 v{T0}, v{T1}, 8, v{T0}", T0, [T0, T1])
        V(f"v_and_b32 v{self.vOB}, 7, v0", self.vOB); V(f"v_lshl_add_u32 v{self.vPL}, v{self.vOB}, 4, v{T0}", self.vPL, [T0, self.vOB])
        S(f"s_lshr_b32 s51, s{sG}, 1", 51); S(f"s_and_b32 s52, s{sG}, 1", 52)
        S(f"s_mul_i32 s50, s{sB}, {23*65536}", 50); S(f"s_lshl_b32 s53, s51, 16", 53, [51]); S("s_add_u32 s50, s50, s53", 50, [50, 53])
        S(f"s_lshl_b32 s53, s{sW}, 10", 53); S("s_add_u32 s50, s50, s53", 50, [50, 53]); S("s_lshl_b32 s53, s52, 7", 53, [52]); S("s_add_u32 s50, s50, s53", 50, [50, 53])
        S("s_add_u32 s53, s51, 1", 53, [51]); S("s_lshr_b32 s53, s53, 3", 53, [53]); S("s_lshl_b32 s53, s53, 30", 53, [53]); self.V(f"v_add_u32 v122, s53, v{self.vPL}", [("s", 53), ("v", self.vPL)], R("v", 122))
        V(f"v_mul_u32_u24 v{self.vOB}, 1152, v{self.vOB}", self.vOB, [self.vOB]); V(f"v_lshl_add_u32 v{self.vOB}, v{T1}, 3, v{self.vOB}", self.vOB, [T1, self.vOB])
        V(f"v_bfe_u32 v{T0}, v0, 5, 3", T0); V(f"v_lshl_add_u32 v{self.vOB}, v{T0}, 4, v{self.vOB}", self.vOB, [T0, self.vOB])
        V(f"v_bfe_u32 v43, v0, 4, 1", 43)
        S(f"s_mul_i32 s55, s{sB}, 92160", 55); S("s_mul_i32 s53, s52, 9216", 53, [52]); S("s_add_u32 s55, s55, s53", 55, [55, 53])
        S("s_lshl_b32 s51, s51, 2", 51, [51]); S("s_or_b32 s51, s51, 0x40000", 51, [51])
        for st in range(3):
            for k in range(2):
                tq = tj = 0
                for i in range(8):
                    e = 2 * (8 * st + i) + k
                    jb, qt = self.ent[e] if e < 45 else (0, 8)
                    tq |= qt << (4 * i); tj |= jb << (4 * i)
                d = 56 + 2 * st + k
                S(f"s_bfe_u32 s52, {hex(tj)}, s51", 52, [51]); S(f"s_add_u32 s52, s52, s{sB9}", 52, [52])
                S("s_add_u32 s53, s52, 7", 53, [52]); S("s_lshr_b32 s53, s53, 4", 53, [53]); S("s_mul_i32 s53, s53, 9", 53, [53]); S("s_sub_u32 s52, s52, s53", 52, [52, 53])
                S("s_lshl_b32 s52, s52, 7", 52, [52]); S(f"s_bfe_u32 s53, {hex(tq)}, s51", 53, [51])
                if st == 2:
                    S(f"s_lshr_b32 s{d}, s53, 3", d, [53]); S(f"s_lshl_b32 s{d}, s{d}, 22", d, [d]); S(f"s_add_u32 s52, s52, s{d}", 52, [52, d])
                S("s_mul_i32 s53, s53, 18432", 53, [53]); S(f"s_add_u32 s{d}, s52, s53", d, [52, 53])
            S(f"s_sub_u32 s{d}, s{d}, s{d-1}", d, [d, d - 1])
    def fuse_event(self, ev, now=False):
        st = int(ev[-1]); ws = f"s[{SRD_WS}:{SRD_WS+3}]"
        if ev.startswith("flag"):
            self.add(Op("B", f"buffer_store_dword v{self.vONE}, v{self.vMBw}, {ws}, s49 offen offset:{64*st} sc1",
                        [("v", self.vONE), ("v", self.vMBw), ("s", 49)] + self.st_tok[st], [], vmtag=[f"st{st}"], note="vm"))
        elif ev.startswith("poll"):
            self.poll_txt = f"buffer_load_dword v{self.vPOLL}, v{self.vMBr}, {ws}, s48 offen offset:{64*st} sc1"
            self.add(Op("B", self.poll_txt, [("v", self.vMBr), ("s", 48)], R("v", self.vPOLL), note="vm"))
        elif ev.startswith("check"):
            b = self.add(Op("B", self.spin(f"st{st}", self.poll_txt, f"v_cmp_ne_u32 vcc, 1, v{self.vPOLL}"), [("v", self.vPOLL)], [("t", f"got{st}"), ("vcc", 0)]))
            va = 122 if st == 2 else self.vPL
            for i in range(4):
                t = 62 + i
                self.S(f"s_add_u32 s{t}, s50, {st*8*65536 + i*16384}", R("s", 50), R("s", t))
                for ga in range(2):
                    d = self.LAND[st] + 4 * (2 * i + ga)
                    txt = f"buffer_load_dwordx4 {rtxt('v', d, 4)}, v{va}, {ws}, s{t} offen offset:{512*ga} sc1"
                    rd = [("v", va), ("s", t), ("t", f"got{st}")]
                    if now: self.add(Op("B", txt, rd, R("v", d, 4), note="vm"))
                    else:
                        g = self.add(Op("G", txt, rd, R("v", d, 4), vmtag=f"pl{st}", want=1))
                        g.pin = b; g.off = 1 + 3 * (2 * i + ga)
        elif ev.startswith("sum"):
            d = self.DT[st]
            for i in range(8):
                self.mfma(d, self.SEL[i & 1], self.LAND[st] + 4 * i, None if i == 0 else d, ca="v")
            for h in range(2):
                self.V(f"v_cvt_pk_bf16_f32 v{d+h}, v{d+2*h}, v{d+2*h+1}", R("v", d + 2 * h, 2), R("v", d + h))
            self.V(f"v_mad_i32_i24 v{self.vOA}, v43, s{57+2*st}, v{self.vOB}", [("v", 43), ("s", 57 + 2 * st), ("v", self.vOB)], R("v", self.vOA))
            self.V(f"v_add_u32 v{self.vOA}, s{56+2*st}, v{self.vOA}", [("s", 56 + 2 * st), ("v", self.vOA)], R("v", self.vOA))
            self.add(Op("G", f"buffer_store_dwordx2 {rtxt('v', d, 2)}, v{self.vOA}, s[{SRD_OUT}:{SRD_OUT+3}], s55 offen{self.o['out_flags']}",
                        R("v", d, 2) + [("v", self.vOA), ("s", 55)], [], vmtag="out", want=2))

    def rd_k(self, h):
        j = h >> 1
        for u in range(2):
            for s in range(4):
                self.dsr("a", KF(h & 1, u, s), 4, aK[(h & 1, s >> 1)], K_SLOT[j % 3] + u * 256 + (s & 1) * 64, f"k{j}")
    def rd_v(self, h):
        j = h >> 1
        for dt in range(8):
            for u in range(2):
                self.dsr("a", VF(h & 1, dt) + 2 * u, 2, aV[(h & 1, dt >> 2)], V_SLOT[j % 3] - V_WIN + 512 * u + 32 * (dt & 3), f"v{j}", tr=True)
    def qts(self, h):
        if h & 1: return [0, 1]
        return {14: [2, 0, 1], 0: [0, 2, 1]}.get(h, [0, 1, 2])
    def qk(self, h, hook=None):
        par = h & 1; n = 0
        for qt in self.qts(h):
            for u in range(2):
                d = Sr(par, qt, u)
                for s in range(4):
                    self.mfma(d, KF(par, u, s), Qf(qt, s), NM(qt) if s == 0 else d)
                    n += 1
                    if hook: hook(n)
                for i in range(4):
                    self.T(f"v_exp_f32 v{d+i}, v{d+i}", R("v", d + i), R("v", d + i))
                for hh in range(2):
                    p = Pr(par, qt) + 2 * u + hh
                    self.V(f"v_cvt_pk_bf16_f32 v{p}, v{d+2*hh}, v{d+2*hh+1}", R("v", d + 2 * hh, 2), R("v", p))
    def pv(self, h, hook=None, only=None):
        par = h & 1; n = 0
        for qt in (only or self.qts(h)):
            first = h == 0
            self.mfma(Lr(qt), ONES, Pr(par, qt), None if first else Lr(qt)); n += 1
            if hook: hook(n, qt, -1)
            for dt in range(8):
                self.mfma(Or(qt, dt), VF(par, dt), Pr(par, qt), None if first else Or(qt, dt)); n += 1
                if hook: hook(n, qt, dt)

    def rd_wo(self, jb):
        slot = self.WO_SLOTS[jb]
        base = 1 if slot == WO_C else 0
        org = [WO_A, WO_C][base]
        for s in range(8):
            for u in range(2):
                self.dsr("a", WF(jb % 3, s) + 2 * u, 2, aWo[base], slot - org + (32 * s + 16 * u) * 128, f"wo{jb}", tr=True)

    def o_finish(self, qt, s, rinv, dst, addr, off, obj, partner=None):
        for u in range(2):
            c = Or(qt, 2 * s + u)
            for i in range(4):
                if partner is not None:
                    q = partner + (2 * s + u) * 4 + i
                    self.V(f"v_add_f32 v{c+i}, v{c+i}, v{q}", [("v", c + i), ("v", q)], R("v", c + i))
                self.V(f"v_mul_f32 v{c+i}, v{rinv}, v{c+i}", [("v", c + i), ("v", rinv)], R("v", c + i))
            for h in range(2):
                self.V(f"v_cvt_pk_bf16_f32 v{dst+2*u+h}, v{c+2*h}, v{c+2*h+1}", R("v", c + 2 * h, 2), R("v", dst + 2 * u + h))
        self.dsw(dst, 4, addr, off, obj)

    def phase_b(self):
        self.stamp(2)
        self.rd_k(1)
        self.qk(0)
        self.barrier("BV0", ["v0"], ["qx"])
        self.rd_v(0)
        for h in range(1, 16):
            j = h >> 1
            self.qk(h)
            if h & 1:
                if j + 1 < 8:
                    self.barrier(f"BK{j+1}", [f"k{j+1}"], [f"k{j}"])
                    self.rd_k(h + 1)
                self.rd_v(h)
                if h < 15: self.pv(h - 1)
            else:
                self.rd_k(h + 1)
                def hook(n, qt, dt, j=j, h=h):
                    if n == self.o["bv_at"]:
                        if self.o["fuse"] and j == 6: self.ready_check()
                        b = self.barrier(f"BV{j}", [f"v{j}"], [f"v{j-1}"], ["o", "o2", "ox", "flag"] if j == 7 else [])
                        if self.o["fuse"] and j == 4: self.ready_poll(b)
                        self.rd_v(h)
                self.pv(h - 1, hook)
        self.obj("o", O_BASE, 40960); self.obj("ox", OX, 4 * 5120); self.obj("flag", FLAG, 16)
        self.objs["o2"] = dict(lo=0, hi=0, w=[])
        PART = 88; PL = 104; RI = [24, 25, 26]
        def hook_sh(n, qt, dt):
            if dt == -1: self.dsw(Lr(2), 1, aOXw, 4096, "ox")
            if dt >= 4: self.dsw(Or(2, dt), 4, aOXw, (dt - 4) * 1024, "ox")
        self.pv(14, hook_sh, [2])
        self.pv(14, None, [0])
        self.barrier("BX", ["ox", "wo0"], ["k7"])
        self.dsr("v", PL, 1, aOXr, 4096, "ox")
        for k in range(4): self.dsr("v", PART + 4 * k, 4, aOXr, k * 1024, "ox")
        self.rd_wo(0)
        self.V(f"v_add_f32 v{PL}, v{PL}, v{Lr(2)}", [("v", PL), ("v", Lr(2))], R("v", PL))
        self.T(f"v_rcp_f32 v{RI[2]}, v{PL}", R("v", PL), R("v", RI[2]))
        for s in range(2): self.o_finish(2, s, RI[2], [128, 136][s], aOws, s * 1024, "o", partner=PART)
        def hook15(n, qt, dt):
            if dt == -1: self.T(f"v_rcp_f32 v{RI[qt]}, v{Lr(qt)}", R("v", Lr(qt)), R("v", RI[qt]))
            if dt >= 0 and dt & 1:
                s = dt >> 1
                dst = [108, 112, 116, 228, 120, 124, 88, 92][qt * 4 + s]
                self.o_finish(qt, s, RI[qt], dst, aOw[s >> 1], qt * 8192 + (s & 1) * 1024, ["o", "o2"][qt])
            if qt == 1 and dt == -1:
                t = 105
                self.V(f"v_max3_f32 v{t}, v{Lr(0)}, v{Lr(1)}, v{PL}", [("v", Lr(0)), ("v", Lr(1)), ("v", PL)], R("v", t))
                self.V(f"v_cmp_lt_f32 vcc, {hex(f32(self.o['hi_thr']))}, v{t}", R("v", t), [("vcc", 0)])
                self.S(f"s_mov_b64 s[6:7], vcc", [("vcc", 0)], R("s", 6, 2))
                self.V(f"v_min3_f32 v{t}, v{Lr(0)}, v{Lr(1)}, v{PL}", [("v", Lr(0)), ("v", Lr(1)), ("v", PL)], R("v", t))
                self.V(f"v_cmp_gt_f32 vcc, {hex(f32(self.o['lo_thr']))}, v{t}", R("v", t), [("vcc", 0)])
                self.S(f"s_or_b64 s[6:7], s[6:7], vcc", [("vcc", 0)] + R("s", 6, 2), R("s", 6, 2))
                self.S(f"s_or_b32 s6, s6, s7", R("s", 6, 2), R("s", 6))
                self.V(f"v_mov_b32 v{t}, s6", R("s", 6), R("v", t))
                self.dsw(t, 1, aFl, 0, "flag")
        self.pv(15, hook15, [0])
        self.pv(14, None, [1])
        self.barrier("C0", ["o", "wo1"], ["ox", "wo0", "v7"])
        for qt in QORD[:3]:
            self.rd_o(qt, "o")
            if qt == QORD[0]: self.rd_wo(1)
        self.pv(15, hook15, [1])

    def rd_o(self, qt, obj):
        for s in range(8): self.dsr("a", OB(qt, s), 4, aOr, (qt * 8 + s) * 1024, obj)

    def phase_c(self):
        self.stamp(3)
        ent = [(jb, qt) for qt in QORD for jb in range(2)] + [(jb, qt) for jb in range(2, 9) for qt in range(5)]
        self.ent = ent; self.st_tok = [[], [], []]; fuse = self.o["fuse"]
        for e, (jb, qt) in enumerate(ent):
            if fuse:
                for ev in self.o["ev"].get(e, []): self.fuse_event(ev)
            if e == self.o["c1_at"]:
                self.barrier("C1", ["o2", "flag", "wo2"], ["wo1"])
                for q in QORD[3:]: self.rd_o(q, "o2")
                self.dsr("v", 100, 4, aFr, 0, "flag")
                self.rd_wo(2)
                self.V("v_or3_b32 v100, v100, v101, v102", R("v", 100, 3), R("v", 100))
                self.V("v_or_b32 v100, v100, v103", [("v", 100), ("v", 103)], R("v", 100))
                self.V("v_readfirstlane_b32 s8, v100", R("v", 100), R("s", 8))
                if not fuse: self.V(f"v_lshlrev_b32 v{vSt2}, 3, v0", R("v", 0) + R("s", 8), R("v", vSt2))
            if e == 10:
                fb = "s_or_b32 s8, s8, 1\n    " if self.o["force_fb"] else ""
                self.add(Op("B", f"{fb}s_andn2_b32 s8, s8, s{sPASS}\n    s_cbranch_scc1 L_fallback", R("s", 8), R("s", 8) + [("t", "checked")]))
                if fuse: self.fuse_setup(("t", "checked"))
            if e >= 10 and qt == 0 and jb + 1 < 9:
                self.barrier(f"E{jb}", [f"wo{jb+1}"], [f"wo{jb}"] + (["o", "o2"] if jb == 2 else []))
                self.rd_wo(jb + 1)
            d = CA(e)
            for s in range(8):
                self.mfma(d, WF(jb % 3, s), OB(qt, s), None if s == 0 else d, cb="a")
            n = e >> 1; p = PK(n) + 2 * (e & 1)
            for h in range(2):
                self.V(f"v_cvt_pk_bf16_f32 v{p+h}, v{d+2*h}, v{d+2*h+1}", R("v", d + 2 * h, 2), R("v", p + h))
            if e & 1 or e == 44:
                t = 10 + (n & 1)
                self.S(f"s_add_u32 s{t}, s{sST}, {n*65536}", R("s", sST), R("s", t))
                w, va = (4, vSt) if (e & 1 or fuse) else (2, vSt2)
                self.st_tok[n >> 3].append(("g", "st", n))
                self.add(Op("G", f"buffer_store_dwordx{w} {rtxt('v', PK(n), w)}, v{va}, s[{SRD_WS}:{SRD_WS+3}], s{t} offen{self.o['st_flags']}",
                            R("v", PK(n), w) + R("v", va) + R("s", t), [("g", "st", n)], vmtag=f"st{n >> 3}", want=self.o["st_want"]))
        if fuse:
            done = [x for v in self.o["ev"].values() for x in v]
            self.add(Op("B", "s_nop 0", self.st_tok[2], []))
            self.stamp(4)
            for ev in self.o.get("tail", ["check1", "flag2", "poll2", "sum0", "check2", "sum1", "sum2"]):
                if ev not in done: self.fuse_event(ev, True)

    def prologue(self):
        P = []
        def S(t, wr=(), rd=()): P.append(Op("S", t, rd, wr))
        def V(t, d=None, rd=()):
            regs = [("v", int(x)) for x in re.findall(r"\bv(\d+)\b", t)]
            sregs = [("s", int(x)) for x in re.findall(r"\bs(\d+)\b", t)]
            if t.startswith("v_readfirstlane"): P.append(Op("V", t, regs, sregs))
            else: P.append(Op("V", t, regs[1:] + sregs, regs[:1]))
        def Lb(t): P.append(Op("L", t))
        S("s_cmp_ge_u32 s2, 256"); S("s_cbranch_scc1 L_end")
        for d, off in ((SRD_WQ, 24), (SRD_X, 0)): S(f"s_load_dwordx2 s[{d}:{d+1}], s[0:1], {off}")
        S("s_lshr_b32 s47, s2, 3")
        if self.o["code_pf"]:
            S("s_getpc_b64 s[64:65]"); S("s_mul_i32 s48, s47, 1280")
            V("v_lshl_add_u32 v26, v0, 3, s48")
            P.append(Op("G", "global_load_dword v255, v26, s[64:65]", R("v", 26), [], vmtag="pf"))
        if self.o["stamps"]: S("s_memrealtime s[96:97]")
        for d, off in ((SRD_K, 8), (SRD_V, 16), (SRD_WO, 32), (SRD_WS, 56), (SRD_OUT, 40), (SRD_DBG, 48)): S(f"s_load_dwordx2 s[{d}:{d+1}], s[0:1], {off}")
        V("v_lshrrev_b32 v24, 6, v0")
        S(f"s_and_b32 s46, s2, 7"); V(f"v_readfirstlane_b32 s{sW}, v24")
        S(f"s_and_b32 s48, s47, 1"); S(f"s_lshl_b32 s46, s46, 1"); S(f"s_or_b32 s{sG}, s46, s48"); S(f"s_lshr_b32 s{sB}, s47, 1")
        S(f"s_cmp_ge_u32 s{sB}, 9"); S("s_cselect_b32 s47, 1, 0"); S("s_cselect_b32 s46, 9, 0"); S(f"s_sub_u32 s10, s{sB}, s46")
        S(f"s_lshl2_add_u32 s9, s48, s10"); S("s_cmp_ge_u32 s9, 9"); S("s_cselect_b32 s46, 9, 0"); S("s_sub_u32 s9, s9, s46")
        S(f"s_lshl_b32 s11, s{sG}, 9"); S(f"s_lshl_b32 s46, s47, 18"); S(f"s_add_u32 s11, s11, s46")
        S(f"s_lshl_b32 s46, s9, 19"); S(f"s_add_u32 s{sWQ(0)}, s46, s11"); S(f"s_xor_b32 s{sWQ(1)}, s{sWQ(0)}, 0x40000")
        S(f"s_mul_i32 s{sMV}, s{sW}, 4224"); S(f"s_mul_i32 s{sMX}, s{sW}, 5120")
        S(f"s_lshr_b32 s4, s{sW}, 1"); S(f"s_and_b32 s46, s{sW}, 1")
        S(f"s_add_u32 s5, s9, s4"); S("s_cmp_ge_u32 s5, 9"); S("s_cselect_b32 s6, 9, 0"); S("s_sub_u32 s5, s5, s6")
        S(f"s_mul_i32 s8, s{sB}, 92160"); S("s_lshl_b32 s5, s5, 7"); S(f"s_add_u32 s{sXo(0)}, s5, s8")
        for d, n in ((SRD_WQ, 4718592), (SRD_X, 1474560)): S(f"s_mov_b32 s{d+2}, {n}"); S(f"s_mov_b32 s{d+3}, 0x20000")
        S(f"s_mov_b32 s{sPASS}, 0")
        Lb("L_restart:")
        S(f"s_lshr_b32 s4, s{sW}, 1")
        V("v_and_b32 v25, 63, v0")
        V("v_lshrrev_b32 v24, 5, v25"); V("v_lshlrev_b32 v24, 17, v24"); V("v_and_b32 v26, 31, v25"); V("v_lshl_add_u32 v24, v26, 4, v24")
        S("s_lshl_b32 s5, s46, 16"); S("s_lshl_b32 s6, s4, 15"); S("s_add_u32 s5, s5, s6")
        V(f"v_add_u32 v{vWq[0]}, s5, v24")
        for a in range(1, 4): V(f"v_add_u32 v{vWq[a]}, {(8192-1056)*a}, v{vWq[0]}")
        V("v_lshrrev_b32 v24, 3, v25"); V("v_mul_u32_u24 v24, 1152, v24")
        V("v_lshrrev_b32 v26, 4, v25"); S("s_lshl_b32 s5, s46, 2"); V("v_or_b32 v26, s5, v26"); V("v_and_b32 v27, 7, v25"); V("v_xor_b32 v26, v26, v27")
        V("v_lshl_add_u32 v26, v26, 4, v24"); S("s_mul_i32 s5, s46, 46080"); V(f"v_add_u32 v{vX[0]}, s5, v26"); V(f"v_xor_b32 v27, 64, v{vX[0]}")
        for m in range(1, 5): V(f"v_add_u32 v{vX[m]}, {9216*m - 1024*(m&3)}, v{27 if m & 1 else vX[0]}")
        S("s_waitcnt lgkmcnt(0)")
        first = P; P = []
        S(f"s_cmp_lg_u32 s{sPASS}, 0"); S("s_cbranch_scc1 L_known")
        def wrap(dst, prev, step, lim, span):
            S(f"s_add_u32 s{dst}, s{prev}, {step}"); S(f"s_cmp_ge_u32 s{dst}, s{lim}"); S(f"s_cselect_b32 s5, {span}, 0"); S(f"s_sub_u32 s{dst}, s{dst}, s5")
        S(f"s_add_u32 s11, s11, {9 << 19}"); S("s_add_u32 s7, s8, 1152")
        wrap(sWQ(2), sWQ(0), 1 << 19, 11, 9 << 19); wrap(sXo(1), sXo(0), 256, 7, 1152)
        Lb("L_known:")
        second = P; P = []
        S(f"s_cmp_lg_u32 s{sPASS}, 0"); S("s_cbranch_scc1 L_known2")
        S(f"s_xor_b32 s{sWQ(3)}, s{sWQ(2)}, 0x40000")
        for j in range(2, 9):
            wrap(sWQ(2 * j), sWQ(2 * j - 2), 1 << 19, 11, 9 << 19); S(f"s_xor_b32 s{sWQ(2*j+1)}, s{sWQ(2*j)}, 0x40000")
        for j in (2, 3): wrap(sXo(j), sXo(j - 1), 256, 7, 1152)
        S(f"s_lshl_b32 s6, s9, 7"); S("s_add_u32 s6, s6, s8"); wrap(sXo(4), 6, 1024, 7, 1152)
        S(f"s_mul_i32 s5, s4, 18432"); S(f"s_add_u32 s{sXo(4)}, s{sXo(4)}, s5")
        S(f"s_mul_i32 s7, s{sG}, 294912"); S("s_lshl_b32 s6, s10, 7"); S(f"s_add_u32 s{sWO(0)}, s6, s7"); S("s_add_u32 s7, s7, 1152")
        for j in range(1, 9): wrap(sWO(j), sWO(j - 1), 128, 7, 1152)
        S(f"s_lshl_b32 s5, s{sB}, 4"); S(f"s_or_b32 s5, s5, s{sG}"); S(f"s_lshl_b32 s{sKV(0)}, s5, 17")
        for j in range(1, 8): S(f"s_add_u32 s{sKV(j)}, s{sKV(0)}, {16384*j}")
        S(f"s_mul_i32 s{sST}, s{sB}, {23*65536}"); S(f"s_lshl_b32 s5, s{sG}, 12"); S(f"s_add_u32 s{sST}, s{sST}, s5")
        S(f"s_xor_b32 s{sMK}, s46, s4"); S(f"s_lshl3_add_u32 s{sMK}, s4, s{sMK}"); S(f"s_mul_i32 s{sMK}, s{sMK}, 1040")
        S(f"s_mul_i32 s{sMX1}, s46, 5120"); S("s_lshl_b32 s5, s4, 11"); S(f"s_add_u32 s{sMX1}, s{sMX1}, s5")
        S(f"s_lshl_b32 s{sMWO}, s{sW}, 13")
        S(f"s_mov_b32 s{sSC}, {hex(f32(QSCALE))}")
        for d, n in ((SRD_K, 33554432), (SRD_V, 33554432), (SRD_WO, 4718592), (SRD_WS, 268435456), (SRD_OUT, 1474560), (SRD_DBG, 256)): S(f"s_mov_b32 s{d+2}, {n}"); S(f"s_mov_b32 s{d+3}, 0x20000")
        for i in range(12): V(f"v_mov_b32 v{NM(0)+i}, 0")
        S(f"s_mov_b32 s{sB9}, s10")
        Lb("L_known2:")
        if self.o["fuse"]:
            S(f"s_lshr_b32 s5, s{sKV(0)}, 7"); S(f"s_and_b32 s6, s{sPASS}, {OOB}"); S(f"s_add_u32 s5, s5, {MB_OFF}")
            V("v_lshl_add_u32 v26, v0, 2, s6"); V("v_mov_b32 v254, 0")
            P.append(Op("G", f"buffer_store_dword v254, v26, s[{SRD_WS}:{SRD_WS+3}], s5 offen sc1", [("v", 254), ("v", 26)], [], vmtag="mbz"))
        V("v_lshrrev_b32 v26, 4, v25"); V("v_and_b32 v27, 15, v25"); V("v_lshlrev_b32 v27, 4, v27")
        V(f"v_lshl_add_u32 v{vK}, v26, 12, v27"); S(f"s_lshl_b32 s5, s{sW}, 10"); V(f"v_add_u32 v{vK}, s5, v{vK}")
        V(f"v_lshl_add_u32 v{vV}, v26, 11, v27"); S("s_lshl_b32 s5, s46, 10"); S("s_lshl_b32 s6, s4, 13"); S("s_add_u32 s5, s5, s6"); V(f"v_add_u32 v{vV}, s5, v{vV}")
        V("v_bfe_u32 v27, v25, 1, 2"); V("v_xor_b32 v27, v27, v26"); V("v_lshlrev_b32 v27, 5, v27"); V(f"v_and_b32 v{vWo}, 1, v25")
        V(f"v_lshl_add_u32 v{vWo}, v{vWo}, 4, v27"); V(f"v_add_u32 v{vWo}, v{vWo}, v24"); S(f"s_mul_i32 s5, s{sW}, 73728"); V(f"v_add_u32 v{vWo}, s5, v{vWo}")
        V("v_bfe_u32 v24, v25, 2, 2"); V("v_bfe_u32 v26, v25, 4, 1"); V("v_lshrrev_b32 v27, 5, v25")
        V("v_and_b32 v128, 3, v25"); V("v_lshlrev_b32 v128, 3, v128"); V("v_and_b32 v129, 15, v25")
        V("v_lshl_add_u32 v130, v26, 2, v24"); V("v_mul_u32_u24 v131, 1056, v130"); V("v_add_u32 v131, v131, v128")
        S("s_lshl_b32 s5, s46, 7"); S("s_xor_b32 s6, s5, 128")
        V("v_lshl_add_u32 v132, v27, 9, v131"); S("s_lshl_b32 s7, s4, 8"); S(f"s_add_u32 s7, s7, {WQ_WIN}")
        S("s_add_u32 s8, s7, s5"); V(f"v_add_u32 v{aWq[0]}, s8, v132"); S("s_add_u32 s8, s7, s6"); V(f"v_add_u32 v{aWq[1]}, s8, v132")
        V("v_lshrrev_b32 v132, 4, v25"); V("v_bfe_u32 v133, v25, 1, 3"); V("v_xor_b32 v132, v132, v133"); S("s_lshl_b32 s7, s47, 2"); V("v_xor_b32 v132, s7, v132")
        V("v_lshlrev_b32 v132, 4, v132"); V("v_lshl_add_u32 v132, v129, 7, v132")
        V(f"v_add_u32 v{aX[(1,0)]}, {A_LO}, v132"); V(f"v_xor_b32 v132, 64, v132"); V(f"v_add_u32 v{aX[(1,1)]}, {A_LO}, v132")
        S("s_mul_i32 s7, s46, 6144"); V(f"v_add_u32 v{aX[(0,0)]}, s7, v{aX[(1,0)]}"); V(f"v_add_u32 v{aX[(0,1)]}, s7, v{aX[(1,1)]}")
        V("v_lshl_add_u32 v132, v27, 8, v131")
        S("s_mul_i32 s7, s46, 8448"); S("s_sub_u32 s8, 8448, s7")
        for hh in range(2):
            for z in range(2):
                S(f"s_add_u32 s9, s{7+hh}, s{5+z}"); S(f"s_add_u32 s9, s9, {V_WIN}"); V(f"v_add_u32 v{aV[(hh,z)]}, s9, v132")
        V("v_lshrrev_b32 v132, 1, v24"); V("v_xor_b32 v133, v132, v24"); V("v_and_b32 v133, 1, v133"); V("v_lshl_add_u32 v133, v132, 3, v133")
        V("v_and_b32 v132, 3, v25"); V("v_lshl_add_u32 v133, v132, 1, v133"); V("v_mul_u32_u24 v133, 1040, v133")
        V("v_lshl_add_u32 v132, v26, 1, v27"); V("v_lshl_add_u32 v133, v132, 4, v133")
        S("s_lshl_b32 s7, s46, 9"); S("s_xor_b32 s8, s7, 512")
        for hh in range(2):
            for z in range(2):
                S(f"s_add_u32 s9, s{7+hh}, s{5+z}"); V(f"v_add_u32 v{aK[(hh,z)]}, s9, v133")
        V("v_lshrrev_b32 v132, 2, v25"); V("v_bfe_u32 v133, v25, 3, 2"); V(f"v_xor_b32 v133, s{sW}, v133"); V("v_lshlrev_b32 v133, 5, v133")
        V("v_lshl_add_u32 v133, v132, 7, v133"); V(f"v_add_u32 v133, v133, v128")
        V(f"v_add_u32 v{aWo[0]}, {WO_A}, v133"); V(f"v_add_u32 v{aWo[1]}, {WO_C}, v133"); V(f"v_mov_b32 v{aFr}, {FLAG}")
        V("v_lshlrev_b32 v132, 4, v25"); V(f"v_add_u32 v{aOr}, {O_BASE}, v132")
        S("s_lshl_b32 s7, s4, 12"); S("s_lshl_b32 s8, s46, 11"); S("s_add_u32 s9, s7, s8"); S("s_add_u32 s10, s9, 16384"); V(f"v_add_u32 v{aOws}, s10, v{aOr}")
        S("s_mul_i32 s10, s46, 24576"); S("s_add_u32 s9, s9, s10"); V(f"v_add_u32 v{aOw[0]}, s9, v{aOr}"); S("s_xor_b32 s9, s9, 2048"); V(f"v_add_u32 v{aOw[1]}, s9, v{aOr}")
        S(f"s_mul_i32 s7, s{sW}, 5120"); S(f"s_add_u32 s7, s7, {OX}"); V(f"v_add_u32 v{aOXw}, s7, v132")
        S(f"s_xor_b32 s8, s{sW}, 1"); S("s_mul_i32 s7, s8, 5120"); S(f"s_add_u32 s7, s7, {OX}"); V(f"v_add_u32 v{aOXr}, s7, v132")
        S(f"s_lshl_b32 s7, s{sW}, 11"); S(f"s_add_u32 s7, s7, {QX}"); V(f"v_add_u32 v{aQXw}, s7, v132")
        S("s_lshl_b32 s7, s8, 11"); S(f"s_add_u32 s7, s7, {QX}"); V(f"v_add_u32 v{aQXr}, s7, v132")
        V(f"v_lshlrev_b32 v{vSt}, 4, v0")
        S(f"s_lshl_b32 s7, s{sW}, 2"); S(f"s_add_u32 s7, s7, {FLAG}"); V(f"v_mov_b32 v{aFl}, s7")
        V("v_mov_b32 v132, 0x3f803f80")
        for i in range(4): P.append(Op("V", f"v_accvgpr_write_b32 a{ONES+i}, v132", R("v", 132), R("a", ONES + i)))
        return first, second, P

    def fallback(self):
        L = []
        A = L.append
        A("L_fallback:")
        A("s_waitcnt vmcnt(0) lgkmcnt(0)"); A("s_barrier")
        for qt in range(3): A(f"v_mov_b32 v{NM(qt)}, 0xff800000")
        A(f"s_mov_b32 s4, s{sKV(0)}"); A("s_mov_b32 s5, 0")
        A("L_fb_loop:")
        for a in range(4):
            A(f"s_add_u32 m0, s{sMK}, {1824*a}"); A("s_nop 0")
            A(f"buffer_load_dwordx4 v{vK}, s[{SRD_K}:{SRD_K+3}], s4 offen offset:{256*a} lds")
        A("s_waitcnt vmcnt(0)"); A("s_barrier")
        for hh in range(2):
            for u in range(2):
                for s in range(4):
                    A(f"ds_read_b128 a[{KF(hh,u,s)}:{KF(hh,u,s)+3}], v{aK[(hh, s>>1)]} offset:{u*256+(s&1)*64}")
        A("s_waitcnt lgkmcnt(0)"); A("s_barrier")
        for hh in range(2):
            for qt in range(3):
                for u in range(2):
                    d = Sr(0, qt, u)
                    for s in range(4):
                        c = "0" if s == 0 else f"v[{d}:{d+3}]"
                        A(f"v_mfma_f32_16x16x32_bf16 v[{d}:{d+3}], a[{KF(hh,u,s)}:{KF(hh,u,s)+3}], v[{Qf(qt,s)}:{Qf(qt,s)+3}], {c}")
            A("s_nop 7"); A("s_nop 1")
            for qt in range(3):
                d = Sr(0, qt, 0)
                for i in range(0, 8, 2): A(f"v_max3_f32 v{NM(qt)}, v{NM(qt)}, v{d+i}, v{d+i+1}")
            A("s_nop 1")
        A("s_add_u32 s4, s4, 16384"); A("s_add_u32 s5, s5, 1"); A("s_cmp_lt_u32 s5, 8"); A("s_cbranch_scc1 L_fb_loop")
        for qt in range(3):
            m = NM(qt)
            for sw in ("16", "32"):
                A(f"v_mov_b32 v{m+1}, v{m}"); A("s_nop 1"); A(f"v_permlane{sw}_swap_b32 v{m}, v{m+1}"); A("s_nop 1"); A(f"v_max_f32 v{m}, v{m}, v{m+1}")
            A(f"v_sub_f32 v{m}, 0, v{m}")
            for i in range(1, 4): A(f"v_mov_b32 v{m+i}, v{m}")
        A(f"s_mov_b32 s{sPASS}, -1")
        A("s_branch L_restart")
        return L

    def check_lds(self, seq):
        touched = []; released = set()
        for o in seq:
            if o.kind == "B": released |= set(o.tag)
            if o.kind in "GW" and o.note in self.objs:
                x = self.objs[o.note]
                for n in touched:
                    y = self.objs[n]
                    if n != o.note and x["lo"] < y["hi"] and y["lo"] < x["hi"]:
                        assert n in released, f"LDS overlap: {o.note} written while {n} live"
                if o.note not in touched: touched.append(o.note)

    def add_prof(self, seq):
        out = []; n = 0; self.marks = []; m = 0
        rt = self.o["prof"] == "rt"; self.mnames = []
        for o in seq:
            if o.kind == "M": m += 1
            hit = o.kind == "B" and o.text == "s_barrier"
            if rt: hit = o.kind == "B" and "dwordx4" not in o.text and (m >= 1000 or m in (0, 320, 350, 384, 715))
            if hit:
                self.mnames.append(o.text.split()[0].replace("buffer_", "").replace("s_", "")[:7])
                j = len(out)
                if out[-1].text.startswith("s_waitcnt"): j -= 1
                pre = []
                if n:
                    pre = [Op("V", f"v_writelane_b32 v{vPR[0]}, s96, {n-1}"), Op("V", f"v_writelane_b32 v{vPR[1]}, s98, {n-1}")]
                out[j:j] = pre + [Op("S", "s_memtime s[96:97]")]
                out.append(o); out.append(Op("S", "s_memtime s[98:99]"))
                self.marks.append(m); n += 1
            else: out.append(o)
        out += [Op("V", f"v_writelane_b32 v{vPR[0]}, s96, {n-1}"), Op("V", f"v_writelane_b32 v{vPR[1]}, s98, {n-1}"),
                Op("S", "s_memtime s[96:97]"), Op("S", "s_waitcnt lgkmcnt(0)"), Op("V", f"v_writelane_b32 v{vPR[0]}, s96, {n}"), Op("V", f"v_writelane_b32 v{vPR[1]}, s96, {n}"),
                Op("S", f"s_lshl_b32 s4, s2, 11"), Op("S", f"s_add_u32 s4, s4, {STAMP_OFF + (1 << 20)}"), Op("V", "v_lshlrev_b32 v24, 2, v0"), Op("S", "s_nop 4"),
                Op("G", f"buffer_store_dword v{vPR[0]}, v24, s[{SRD_WS}:{SRD_WS+3}], s4 offen"), Op("G", f"buffer_store_dword v{vPR[1]}, v24, s[{SRD_WS}:{SRD_WS+3}], s4 offen offset:1024")]
        self.marks.append(m)
        if rt:
            k = [i for i, o in enumerate(out) if o.text == "s_memtime s[96:97]"][-1]
            out.insert(k, Op("S", "s_waitcnt vmcnt(0)"))
            res = []
            for o in out:
                if o.text.startswith("s_memtime"): o.text = o.text.replace("s_memtime", "s_memrealtime")
                if o.text.startswith(f"v_writelane_b32 v{vPR[0]}"): res.append(Op("S", "s_waitcnt lgkmcnt(0)"))
                res.append(o)
            out = res
        return out

    def k1(self):
        first, second, rest = self.prologue()
        self.plan = self.o["plan"]; self.spins = []
        parts = []
        for names in self.o["start"]:
            self.ops = []
            for n in names: self.load(n)
            parts.append(self.ops)
        self.ops = []
        self.phase_a(); self.phase_b(); self.phase_c()
        body = schedule(self.ops)
        seq = first + parts[0] + second + parts[1] + rest + parts[2] + body
        self.check_lds(seq)
        seq = insert_waits(seq)
        if self.o.get("prof"): seq = self.add_prof(seq)
        seq, nops = fix_hazards(seq)
        self.stats = dict(n=len(seq), nops=nops, est=estimate(seq), mfma=sum(o.kind == "M" for o in seq))
        self.seq = seq
        L = [("" if o.kind == "L" else "    ") + o.text for o in seq]
        if self.o["stamps"]:
            if not self.o["fuse"]: L += ["s_memrealtime s[68:69]"]
            L += ["s_waitcnt vmcnt(0)", "s_memrealtime s[70:71]", "s_waitcnt lgkmcnt(0)"]
            for i, r in enumerate([96, 97, 98, 99, 100, 101, 66, 67, 68, 69, 70, 71]): L.append(f"v_mov_b32 v{28+i}, s{r}")
            L += ["s_lshl_b32 s4, s2, 6", f"s_add_u32 s4, s4, {STAMP_OFF}", "v_cmp_eq_u32 vcc, 0, v0", "s_and_saveexec_b64 s[6:7], vcc", "s_cbranch_execz L_end", "v_mov_b32 v24, 0"]
            for i in range(3): L.append(f"buffer_store_dwordx4 v[{28+4*i}:{31+4*i}], v24, s[{SRD_WS}:{SRD_WS+3}], s4 offen offset:{16*i}")
        L += ["L_end:", "    s_endpgm"]
        for name, load, cmp in self.spins:
            L += [f"L_spin_{name}:", f"    s_mov_b32 s7, {self.o['spin_max']}", f"L_again_{name}:", "    " + load, "    s_waitcnt vmcnt(0)", "    " + cmp, "    s_nop 1",
                  f"    s_cbranch_vccz L_back_{name}", "    s_sub_u32 s7, s7, 1", "    s_cmp_lg_u32 s7, 0", f"    s_cbranch_scc1 L_again_{name}", f"    s_branch L_back_{name}"]
        L += [("" if x.endswith(":") else "    ") + x for x in self.fallback()]
        return L

    def k2(self):
        L = []; A = L.append
        fl = self.o["ld_flags"]
        A("s_cmp_ge_u32 s2, 368"); A("s_cbranch_scc1 L_end2")
        A("s_load_dwordx2 s[4:5], s[0:1], 40"); A("s_load_dwordx2 s[6:7], s[0:1], 56")
        if self.o["stamps"]: A("s_memrealtime s[40:41]")
        A(f"s_mov_b32 s3, {(2**32 + 22)//23}"); A("s_mul_hi_u32 s20, s2, s3"); A("s_mul_i32 s3, s20, 23"); A("s_sub_u32 s21, s2, s3")
        A("s_lshl_b32 s22, s2, 16")
        A("s_cmp_eq_u32 s21, 22"); A("s_cselect_b32 s23, 3, 4")
        A("v_lshlrev_b32 v1, s23, v0")
        A("s_waitcnt lgkmcnt(0)")
        A("s_mov_b32 s8, s6"); A("s_and_b32 s9, s7, 0xffff"); A("s_mov_b32 s10, 268435456"); A("s_mov_b32 s11, 0x20000")
        for g in range(16):
            if g: A(f"s_add_u32 s22, s22, 4096")
            A(f"buffer_load_dwordx4 v[{8+4*g}:{11+4*g}], v1, s[8:11], s22 offen{fl}")
        A("s_mov_b32 s12, s4"); A("s_and_b32 s13, s5, 0xffff"); A("s_mov_b32 s14, 1474560"); A("s_mov_b32 s15, 0x20000")
        A("s_cmp_ge_u32 s20, 9"); A("s_cselect_b32 s3, 9, 0"); A("s_sub_u32 s24, s20, s3")
        A("s_mul_i32 s25, s20, 92160")
        for k in range(2):
            A(f"s_lshl_b32 s26, s21, 1"); A(f"s_add_u32 s26, s26, {k}")
            A("s_mul_i32 s27, s26, 52"); A("s_lshr_b32 s27, s27, 8"); A("s_mul_i32 s3, s27, 5"); A("s_sub_u32 s26, s26, s3")
            A("s_lshl_b32 s3, s21, 2"); A("s_lshr_b32 s3, 0x41302, s3"); A("s_and_b32 s3, s3, 15"); A("s_cmp_lt_u32 s21, 5")
            A("s_cselect_b32 s26, s3, s26"); A(f"s_cselect_b32 s27, {k}, s27")
            A("s_add_u32 s27, s27, s24"); A("s_cmp_ge_u32 s27, 9"); A("s_cselect_b32 s3, 9, 0"); A("s_sub_u32 s27, s27, s3")
            A("s_lshl_b32 s27, s27, 7"); A("s_mul_i32 s26, s26, 18432"); A("s_add_u32 s26, s26, s27"); A(f"s_add_u32 s{28+k}, s26, s25")
        A("v_and_b32 v2, 15, v0"); A("v_mul_u32_u24 v2, 1152, v2"); A("v_lshrrev_b32 v3, 4, v0"); A("v_lshl_add_u32 v2, v3, 3, v2")
        for g in range(16):
            A(f"s_waitcnt vmcnt({15-g})")
            for j in range(4):
                r = 8 + 4 * g + j
                if g == 0:
                    A(f"v_lshlrev_b32 v{72+2*j}, 16, v{r}"); A(f"v_and_b32 v{73+2*j}, 0xffff0000, v{r}")
                else:
                    A(f"v_lshlrev_b32 v4, 16, v{r}"); A(f"v_and_b32 v5, 0xffff0000, v{r}")
                    A(f"v_add_f32 v{72+2*j}, v{72+2*j}, v4"); A(f"v_add_f32 v{73+2*j}, v{73+2*j}, v5")
        for j in range(4): A(f"v_cvt_pk_bf16_f32 v{8+j}, v{72+2*j}, v{73+2*j}")
        A("buffer_store_dwordx2 v[8:9], v2, s[12:15], s28 offen")
        A("s_cmp_eq_u32 s21, 22"); A("s_cbranch_scc1 L_skip2")
        A("buffer_store_dwordx2 v[10:11], v2, s[12:15], s29 offen")
        A("L_skip2:")
        if self.o["stamps"]:
            A("s_waitcnt vmcnt(0)"); A("s_memrealtime s[42:43]"); A("s_waitcnt lgkmcnt(0)")
            for i in range(4): A(f"v_mov_b32 v{12+i}, s{40+i}")
            A("s_lshl_b32 s3, s2, 6"); A(f"s_add_u32 s3, s3, {STAMP_OFF + 48}")
            A("v_cmp_eq_u32 vcc, 0, v0"); A("s_and_saveexec_b64 s[16:17], vcc"); A("s_cbranch_execz L_end2"); A("v_mov_b32 v1, 0")
            A("buffer_store_dwordx4 v[12:15], v1, s[8:11], s3 offen")
        A("L_end2:"); A("s_endpgm")
        return [("" if x.endswith(":") else "    ") + x for x in L]

    def text(self):
        head = open("cdna_kernels/" + NAME + ".s.ref").read().splitlines()[:9]
        if self.o["fuse"]:
            ks = [(NAME + "_kernel", self.k1(), 512, 256, 102)]
            L = head + [f"; @launch grid=(256,1,1) block=(256,1,1) lds={LDS}"]
        else:
            ks = [("gqa_main_kernel", self.k1(), 512, 256, 102), ("gqa_sum_kernel", self.k2(), 80, 80, 48)]
            L = head + [f"; @launch kernel=gqa_main_kernel grid=(256,1,1) block=(256,1,1) lds={LDS}",
                        "; @launch kernel=gqa_sum_kernel grid=(368,1,1) block=(256,1,1) lds=0"]
        L += ['.amdgcn_target "amdgcn-amd-amdhsa--gfx950"', ".text"]
        for name, body, _, _, _ in ks:
            L += [f".globl {name}", ".p2align 8", f".type {name},@function", f"{name}:"] + body
        L += [".p2align 8", ".fill 3072, 4, 0xbf800000"]
        L += ['.section .rodata,"a"']
        for name, _, vg, acc, sg in ks:
            L += [".p2align 6", f".amdhsa_kernel {name}", f"  .amdhsa_next_free_vgpr {vg}", f"  .amdhsa_next_free_sgpr {sg}", f"  .amdhsa_accum_offset {acc}",
                  "  .amdhsa_group_segment_fixed_size 0", "  .amdhsa_kernarg_size 64", "  .amdhsa_user_sgpr_count 2",
                  "  .amdhsa_user_sgpr_kernarg_segment_ptr 1", "  .amdhsa_system_sgpr_workgroup_id_x 1", ".end_amdhsa_kernel"]
        if self.o.get("prof"): L.append("; names " + " ".join(self.mnames)); L.append(("; rtmarks " if self.o["prof"] == "rt" else "; marks ") + " ".join(map(str, self.marks)))
        return "\n".join(L) + "\n"

if __name__ == "__main__":
    g = Gen()
    t = g.text()
    out = sys.argv[1] if len(sys.argv) > 1 else "k.s"
    open(out, "w").write(t)
    print(g.stats)
```

```python
import k1, sys
from probe_util import add_kernel
STAMP_OFF = k1.STAMP_OFF
def diag_body(metric, n2=368):
    L = []; A = L.append
    A("s_cmp_ge_u32 s2, 1"); A("s_cbranch_scc1 L_endd")
    A("s_memrealtime s[10:11]"); A("s_load_dwordx2 s[4:5], s[0:1], 56"); A("s_waitcnt lgkmcnt(0)")
    A(f"s_add_u32 s4, s4, {STAMP_OFF}"); A("s_addc_u32 s5, s5, 0")
    A("s_load_dword s60, s[4:5], 0"); A("s_waitcnt lgkmcnt(0)"); A("s_sub_u32 s60, s60, 100000")
    A("s_mov_b32 s40, -1"); A("s_mov_b32 s41, 0"); A("s_mov_b32 s42, 0"); A("s_mov_b32 s43, -1"); A("s_mov_b32 s44, 0")
    for j in range(1, 6): A(f"s_mov_b32 s{50+j}, 0")
    A("s_mov_b32 s6, 0")
    A("L_dl:"); A("s_load_dwordx16 s[16:31], s[4:5], 0"); A("s_waitcnt lgkmcnt(0)")
    for j in range(8): A(f"s_sub_u32 s{16+2*j}, s{16+2*j}, s60")
    A("s_min_u32 s43, s43, s28"); A("s_max_u32 s44, s44, s30")
    A("s_cmp_ge_u32 s6, 256"); A("s_cbranch_scc1 L_dn")
    A("s_min_u32 s40, s40, s16"); A("s_max_u32 s41, s41, s16"); A("s_max_u32 s42, s42, s26")
    for j in range(1, 6): A(f"s_sub_u32 s7, s{16+2*j}, s16"); A(f"s_add_u32 s{50+j}, s{50+j}, s7")
    A("L_dn:"); A("s_add_u32 s4, s4, 64"); A("s_addc_u32 s5, s5, 0"); A("s_add_u32 s6, s6, 1"); A(f"s_cmp_lt_u32 s6, {n2}"); A("s_cbranch_scc1 L_dl")
    if metric == "base": A("s_mov_b32 s8, 0")
    elif metric == "front":
        A("s_load_dword s61, s[4:5], 0"); A("s_waitcnt lgkmcnt(0)"); A("s_sub_u32 s61, s61, s60"); A("s_sub_u32 s8, s40, s61")
    elif metric == "back": A("s_sub_u32 s61, s10, s60"); A("s_sub_u32 s8, s61, s42")
    elif metric == "span": A("s_sub_u32 s8, s44, s40")
    elif metric == "k1span": A("s_sub_u32 s8, s42, s40")
    elif metric == "skew": A("s_sub_u32 s8, s41, s40")
    elif metric == "gap": A("s_sub_u32 s8, s43, s42")
    else: A(f"s_lshr_b32 s8, s{50+int(metric)}, 8")
    A("s_min_u32 s8, s8, 20000"); A("s_mul_i32 s8, s8, 10"); A("s_add_u32 s8, s8, 20000")
    A("L_sp:"); A("s_memrealtime s[12:13]"); A("s_waitcnt lgkmcnt(0)"); A("s_sub_u32 s9, s12, s10"); A("s_cmp_lt_u32 s9, s8"); A("s_cbranch_scc1 L_sp")
    A("L_endd:"); A("s_endpgm")
    return "\n".join(L)
def make(metrics, front=False, tag="", **kw):
    base = k1.Gen(stamps=True, **kw).text()
    base = base.replace("; @launch grid=", "; @launch kernel=gqa_main_kernel grid=").replace(k1.NAME + "_kernel", "gqa_main_kernel")
    if front:
        body = f"""s_cmp_ge_u32 s2, 1
s_cbranch_scc1 L_endf
s_load_dwordx2 s[8:9], s[0:1], 56
s_mov_b32 s10, 268435456
s_mov_b32 s11, 0x20000
s_mov_b32 s3, {STAMP_OFF + 256 * 64}
v_mov_b32 v2, 0
s_waitcnt lgkmcnt(0)
s_memrealtime s[4:5]
s_waitcnt lgkmcnt(0)
v_mov_b32 v1, s4
buffer_store_dword v1, v2, s[8:11], s3 offen
L_endf:
s_endpgm"""
        base = add_kernel(base, "front_kernel", body, 1, 64, 0, 8, front=True)
    for m in metrics:
        open(f"d_{m}{tag}.s", "w").write(add_kernel(base, "diag_kernel", diag_body(m, 256), 1, 64, 0, 8))
if __name__ == "__main__":
    make(["base", "k1span", "back", "skew"])
    make(["base", "front"], front=True, tag="F")
```
